```python
import torch

def _softmax(x, axis=-1):
    return torch.softmax(x, dim=axis)
def _gelu(x):
    return torch.nn.functional.gelu(x, approximate="tanh")
def _silu(x):
    return torch.nn.functional.silu(x)
def _sigmoid(x):
    return torch.sigmoid(x)
def _layernorm(x, axis=-1, eps=1e-5):
    m = x.mean(dim=axis, keepdim=True)
    v = x.var(dim=axis, keepdim=True, unbiased=False)
    return (x - m) / torch.sqrt(v + eps)
def _scatter_add(tgt, idx, src, axis=0):
    return tgt.clone().index_add_(axis, idx, src)
def _segment_sum(src, seg, n):
    out = torch.zeros((n,) + src.shape[1:], dtype=src.dtype)
    return out.index_add_(0, seg, src)
def _pad(x, pw):
    flat = tuple(v for pair in reversed(pw) for v in pair)
    return torch.nn.functional.pad(x, flat)

kernel_name = 'standalone__dense_activation_squared_relu__prompt'

def setup_inputs():

    _w = (lambda a: (lambda t: t.to(torch.bfloat16) if t.is_floating_point() else t)(torch.as_tensor(a)))
    B, S, D, F = 1, 2048, 1024, 3584
    return {
        "x": _w((lambda *s: torch.randn(*s, dtype=torch.bfloat16) * 0.05)(B, S, D)),
        "w1": _w((lambda *s: torch.randn(*s, dtype=torch.bfloat16) * 0.05)(D, F)),
        "b1": _w((lambda *s: torch.randn(*s, dtype=torch.bfloat16) * 0.05)(F)),
        "w2": _w((lambda *s: torch.randn(*s, dtype=torch.bfloat16) * 0.05)(F, D)),
        "b2": _w((lambda *s: torch.randn(*s, dtype=torch.bfloat16) * 0.05)(D)),
    }

def reference(x, w1, b1, w2, b2):
    h = torch.einsum("bsd,df->bsf", x, w1) + b1
    zero = torch.zeros_like(h)
    r = torch.where(h > zero, h, zero)
    h = r * r
    out = torch.einsum("bsf,fd->bsd", h, w2) + b2
    return out
```

```python
import sys
NAME = "standalone__dense_activation_squared_relu__prompt"
opts = dict(a.split("=") for a in sys.argv[2:])
STAMP = int(opts.get("stamp", 0))
NOMFMA = int(opts.get("nomfma", 0))
NOTR = int(opts.get("notr", 0))
HST = opts.get("hst", "")
HST = HST.replace("+", " ")

class A:
    def __init__(s): s.l = []
    def __call__(s, t):
        for x in t.strip("\n").split("\n"): s.l.append("    " + x.strip())
    def label(s, n): s.l.append(n + ":")
    def text(s): return "\n".join(s.l)

def interleave(a, mfmas, fillers):
    for x in fillers.get(-1, []): a(x)
    for i, m in enumerate(mfmas):
        a(m if not NOMFMA else "s_nop 0")
        for x in fillers.get(i, []): a(x)

def srd(a, d, lo, hi, nrec):
    a(f"s_mov_b32 s{d}, s{lo}\ns_and_b32 s{d+1}, s{hi}, 0xffff\ns_mov_b32 s{d+2}, {nrec}\ns_mov_b32 s{d+3}, 0x20000")

def stamp(a, i):
    if STAMP: a(f"s_memtime s[{70+2*i}:{71+2*i}]")
def stamp_rt(a, i):
    if STAMP: a(f"s_memrealtime s[{70+2*i}:{71+2*i}]")
def stamp_out(a, n, wsoff, ws=None):
    if not STAMP: return
    a("s_load_dwordx2 s[60:61], s[0:1], 56\ns_waitcnt lgkmcnt(0)")
    a(f"s_add_u32 s60, s60, {wsoff}\ns_addc_u32 s61, s61, 0")
    srd(a, 64, 60, 61, 0x100000)
    a("s_lshl_b32 s62, s2, 2\ns_add_u32 s62, s62, s3\ns_lshl_b32 s62, s62, 6\nv_mov_b32 v0, s62")
    for i in range(n):
        a(f"v_mov_b32 v1, s{70+2*i}\nbuffer_store_dword v1, v0, s[64:67], 0 offen offset:{4*i}")
    a("s_waitcnt vmcnt(0)")

def gemm1():
    a = A()
    R = 4; STG = 28672
    ACC = 16
    WB = [0, 56]
    XB = 112
    VD = 128
    VX = 135
    VT = 138
    BI = 144
    stamp_rt(a, 0); stamp(a, 1)
    a("s_cmp_ge_u32 s2, 256\ns_cbranch_scc1 L1_end")
    a("s_load_dwordx4 s[4:7], s[0:1], 0\ns_load_dwordx2 s[8:9], s[0:1], 16\ns_load_dwordx2 s[10:11], s[0:1], 56")
    a("v_lshrrev_b32 v1, 6, v0\nv_and_b32 v0, 63, v0\ns_nop 0\nv_readfirstlane_b32 s3, v1")
    a("s_and_b32 s12, s2, 1\ns_lshl_b32 s12, s12, 3\ns_lshr_b32 s13, s2, 3\ns_and_b32 s14, s13, 7\ns_add_u32 s12, s12, s14")
    a("s_lshr_b32 s14, s2, 1\ns_and_b32 s14, s14, 3\ns_lshl_b32 s14, s14, 2\ns_lshr_b32 s13, s13, 3\ns_add_u32 s13, s13, s14")
    a("s_mov_b32 s15, 9363\ns_mul_i32 s16, s3, 16*7168")
    for i in range(7):
        a(f"v_add_u32 v2, {64*i}, v0\nv_mul_u32_u24 v3, s15, v2\nv_lshrrev_b32 v3, 18, v3\nv_mul_u32_u24 v4, 28, v3\nv_sub_u32 v4, v2, v4")
        a(f"v_lshrrev_b32 v5, 2, v3\nv_and_b32 v5, 2, v5\nv_xor_b32 v4, v4, v5\nv_mul_u32_u24 v3, 7168, v3\nv_lshl_add_u32 v3, v4, 4, v3")
        a(f"v_add_u32 v3, s16, v3\nv_subrev_u32 v{VD+i}, {(i&3)*1024}, v3")
    a(f"v_and_b32 v2, 15, v0\nv_lshrrev_b32 v3, 4, v0\ns_lshl_b32 s16, s3, 16\nv_lshlrev_b32 v2, 11, v2\nv_lshl_add_u32 v2, v3, 4, v2\nv_add_u32 v{VX}, s16, v2\nv_add_u32 v{VX+1}, 32768, v{VX}")
    a("v_lshlrev_b32 v6, 3, v3")
    a("s_waitcnt lgkmcnt(0)")
    a("s_lshl_b32 s16, s12, 18\ns_add_u32 s4, s4, s16\ns_addc_u32 s5, s5, 0")
    srd(a, 20, 4, 5, 262144)
    a("s_mul_i32 s16, s13, 448\ns_add_u32 s6, s6, s16\ns_addc_u32 s7, s7, 0\ns_sub_u32 s17, 7340032, s16")
    srd(a, 24, 6, 7, "s17")
    a("s_add_u32 s8, s8, s16\ns_addc_u32 s9, s9, 0")
    srd(a, 28, 8, 9, 448)
    a("s_mul_i32 s16, s12, 112\ns_mul_i32 s17, s13, 7\ns_add_u32 s16, s16, s17\ns_lshl_b32 s16, s16, 13\ns_add_u32 s10, s10, s16\ns_addc_u32 s11, s11, 0")
    srd(a, 32, 10, 11, 57344)
    a("s_mul_i32 s36, s3, 7168")
    a("s_mov_b32 s37, 0\ns_mov_b32 s38, 0")
    def dma(slot):
        r = []
        for i in range(7):
            pre = ""
            if i == 0: pre = f"s_add_u32 m0, s36, {slot*STG}\n"
            if i == 4: pre = f"s_add_u32 m0, s36, {slot*STG+4096}\n"
            r.append((pre, f"buffer_load_dwordx4 v{VD+i}, s[24:27], s37 offen offset:{(i&3)*1024} lds"))
        return r
    def xld(slot):
        return [f"buffer_load_dwordx4 a[{XB+slot*16+(j*2+mt)*4}:{XB+slot*16+(j*2+mt)*4+3}], v{VX+mt}, s[20:23], s38 offen offset:{64*j}" for mt in range(2) for j in range(2)]
    for s in range(R):
        for pre, x in dma(s):
            if pre: a(pre + "s_nop 0")
            a(x)
        a("s_add_u32 s37, s37, 458752")
        if s < R-1:
            for x in xld(s): a(x)
            a("s_add_u32 s38, s38, 128")
        if s == 0:
            for t in range(14): a(f"buffer_load_dwordx2 v[{BI+2*t}:{BI+2*t+1}], v6, s[28:31], 0 offen offset:{32*t}")
    a("v_lshrrev_b32 v2, 2, v0\nv_and_b32 v2, 3, v2\nv_lshl_add_u32 v2, v3, 3, v2\nv_mul_u32_u24 v2, 448, v2\nv_and_b32 v4, 3, v0\nv_lshl_add_u32 v2, v4, 3, v2")
    a(f"v_and_b32 v4, 1, v3\nv_lshlrev_b32 v4, 5, v4\nv_add_u32 v{VT}, v2, v4\nv_xor_b32 v4, 32, v4\nv_add_u32 v{VT+1}, v2, v4")
    a(f"v_add_u32 v{VT+2}, {2*STG}, v{VT}\nv_add_u32 v{VT+3}, {2*STG}, v{VT+1}")
    def trs(slot, j, buf):
        r = []
        for t in range(14):
            for i in range(2):
                off = (slot&1)*STG + j*32*448 + i*4*448 + (t & ~1)*32
                d = WB[buf] + t*4 + i*2
                r.append(f"ds_read_b64_tr_b16 a[{d}:{d+1}], v{VT+(slot>>1)*2+(t&1)} offset:{off}")
        return [] if NOTR else r
    stamp(a, 2)
    a(f"s_waitcnt vmcnt({(R-2)*11+7})")
    for t in range(14):
        for mt in range(2):
            d = ACC + (t*2+mt)*4
            a(f"v_lshlrev_b32 v{d}, 16, v{BI+2*t}\nv_and_b32 v{d+1}, 0xffff0000, v{BI+2*t}\nv_lshlrev_b32 v{d+2}, 16, v{BI+2*t+1}\nv_and_b32 v{d+3}, 0xffff0000, v{BI+2*t+1}")
    a("s_barrier")
    stamp(a, 3)
    for x in trs(0, 0, 0): a(x)
    a("s_mov_b32 s39, 0")
    a.label("L1_loop")
    def mf(slot, j, buf):
        return [f"v_mfma_f32_16x16x32_bf16 v[{ACC+(t*2+mt)*4}:{ACC+(t*2+mt)*4+3}], a[{WB[buf]+t*4}:{WB[buf]+t*4+3}], a[{XB+slot*16+(j*2+mt)*4}:{XB+slot*16+(j*2+mt)*4+3}], v[{ACC+(t*2+mt)*4}:{ACC+(t*2+mt)*4+3}]" for t in range(14) for mt in range(2)]
    def spread(f, items, start, num, den):
        for n, x in enumerate(items): f.setdefault(start + n*den//num, []).append(x)
    for s in range(R):
        f = {-1: ["s_waitcnt lgkmcnt(0)"]}
        spread(f, trs(s, 1, 1), 0, 3, 2)
        if s == 1: f.setdefault(19, []).append("s_cmp_eq_u32 s39, 3\ns_cselect_b32 s22, 0, s22")
        spread(f, xld((s-1) % R), 20, 1, 1)
        f.setdefault(24, []).append("s_add_u32 s38, s38, 128")
        interleave(a, mf(s, 0, 0), f)
        f = {-1: [f"s_waitcnt vmcnt({(R-2)*11}) lgkmcnt(0)", "s_barrier"]}
        spread(f, trs((s+1) % R, 0, 0), 0, 3, 2)
        if s == 0: f.setdefault(18, []).append("s_cmp_eq_u32 s39, 3\ns_cselect_b32 s26, 0, s26")
        for n, (pre, x) in enumerate(dma(s)):
            if pre: f.setdefault(19+n, []).append(pre)
            f.setdefault(20+n, []).append(x)
        f.setdefault(27, []).append("s_add_u32 s37, s37, 458752")
        if s == R-1: f[27].append("s_add_u32 s39, s39, 1\ns_cmp_lt_u32 s39, 4")
        interleave(a, mf(s, 1, 1), f)
    a("s_cbranch_scc1 L1_loop")
    stamp(a, 4)
    a("s_lshl_b32 s16, s3, 11\nv_lshlrev_b32 v2, 4, v0\nv_add_u32 v2, s16, v2\ns_nop 7")
    for u in range(7):
        for mt in range(2):
            o = 176 + ((u*2+mt) % 4)*4
            for h in range(2):
                d = ACC + ((2*u+h)*2+mt)*4
                for e in range(4): a(f"v_max_f32 v{d+e}, 0, v{d+e}")
                a(f"v_pk_mul_f32 v[{d}:{d+1}], v[{d}:{d+1}], v[{d}:{d+1}]\nv_pk_mul_f32 v[{d+2}:{d+3}], v[{d+2}:{d+3}], v[{d+2}:{d+3}]")
                a(f"v_cvt_pk_bf16_f32 v{o+2*h}, v{d}, v{d+1}\nv_cvt_pk_bf16_f32 v{o+2*h+1}, v{d+2}, v{d+3}")
            if mt == 0: a(f"s_mov_b32 s16, {u*8192}")
            a(f"buffer_store_dwordx4 v[{o}:{o+3}], v2, s[32:35], s16 offen offset:{mt*1024} {HST}")
    stamp(a, 5)
    if STAMP: a("s_waitcnt vmcnt(0)")
    stamp(a, 6); stamp_rt(a, 7)
    stamp_out(a, 8, 0x8000000)
    a.label("L1_end")
    return a.text()

def gemm2():
    a = A()
    ACC = 16
    HB = 0
    WB = [128, 144]
    VD = 144
    VH = 148
    VT = 152
    BI = 156
    stamp_rt(a, 0); stamp(a, 1)
    a("s_cmp_ge_u32 s2, 256\ns_cbranch_scc1 L2_end")
    a("s_load_dwordx4 s[4:7], s[0:1], 24\ns_load_dwordx2 s[8:9], s[0:1], 40\ns_load_dwordx2 s[10:11], s[0:1], 56")
    a("v_lshrrev_b32 v1, 6, v0\nv_and_b32 v0, 63, v0\ns_nop 0\nv_readfirstlane_b32 s3, v1")
    a("s_and_b32 s12, s2, 3\ns_lshl_b32 s12, s12, 2\ns_lshr_b32 s13, s2, 3\ns_and_b32 s14, s13, 3\ns_add_u32 s12, s12, s14")
    a("s_lshr_b32 s14, s2, 2\ns_and_b32 s14, s14, 1\ns_lshl_b32 s14, s14, 3\ns_lshr_b32 s13, s13, 2\ns_add_u32 s13, s13, s14")
    a("v_lshrrev_b32 v2, 3, v0\nv_and_b32 v3, 7, v0\nv_and_b32 v4, 6, v2\nv_xor_b32 v3, v3, v4\nv_lshlrev_b32 v2, 11, v2\nv_lshl_add_u32 v2, v3, 4, v2")
    a(f"s_mul_i32 s16, s3, 896*2048\nv_add_u32 v{VD}, s16, v2")
    for i in range(1, 4): a(f"v_add_u32 v{VD+i}, {i*15360}, v{VD}")
    a("v_lshlrev_b32 v2, 4, v0\ns_mul_i32 s16, s3, 28*8192")
    for jp in range(4):
        a(f"s_add_u32 s17, s3, {jp}\ns_and_b32 s17, s17, 3\ns_lshl_b32 s17, s17, 11\ns_add_u32 s17, s17, s16\nv_add_u32 v{VH+jp}, s17, v2")
    a("v_lshrrev_b32 v3, 4, v0\nv_lshlrev_b32 v6, 3, v3")
    a("s_waitcnt lgkmcnt(0)")
    a("s_lshl_b32 s16, s13, 7\ns_add_u32 s4, s4, s16\ns_addc_u32 s5, s5, 0\ns_sub_u32 s17, 7340032, s16")
    srd(a, 24, 4, 5, "s17")
    a("s_add_u32 s6, s6, s16\ns_addc_u32 s7, s7, 0")
    srd(a, 28, 6, 7, 128)
    a("s_mul_i32 s17, s12, 112*8192\ns_add_u32 s10, s10, s17\ns_addc_u32 s11, s11, 0")
    srd(a, 20, 10, 11, 112*8192)
    a("s_lshl_b32 s17, s12, 18\ns_add_u32 s16, s16, s17\ns_add_u32 s8, s8, s16\ns_addc_u32 s9, s9, 0\ns_sub_u32 s17, 4194304, s16")
    srd(a, 32, 8, 9, "s17")
    WLDS = 24576
    a(f"s_mul_i32 s36, s3, {WLDS}\ns_mov_b32 s37, 0\ns_mov_b32 s38, 0")
    def dma(slot):
        return [(f"s_add_u32 m0, s36, {slot*4096}" if i == 0 else "", f"buffer_load_dwordx4 v{VD+i}, s[24:27], s37 offen offset:{i*1024} lds") for i in range(4)]
    def hld(slot):
        return [f"buffer_load_dwordx4 a[{HB+slot*32+mt*4}:{HB+slot*32+mt*4+3}], v{VH+(mt>>1)}, s[20:23], s38 offen offset:{(mt&1)*1024}" for mt in range(8)]
    for t in range(4): a(f"buffer_load_dwordx2 v[{BI+2*t}:{BI+2*t+1}], v6, s[28:31], 0 offen offset:{32*t}")
    for s in range(4):
        for pre, x in dma(s):
            if pre: a(pre + "\ns_nop 0")
            a(x)
        for x in hld(s): a(x)
        a("s_add_u32 s37, s37, 65536\ns_add_u32 s38, s38, 8192")
    a("v_lshrrev_b32 v2, 2, v0\nv_lshrrev_b32 v4, 1, v2\nv_and_b32 v4, 3, v4\nv_lshlrev_b32 v2, 7, v2\nv_and_b32 v5, 3, v0\nv_lshl_add_u32 v2, v5, 3, v2\nv_add_u32 v2, s36, v2")
    for t in range(4): a(f"v_xor_b32 v5, {t}, v4\nv_lshl_add_u32 v{VT+t}, v5, 5, v2")
    def trs(slot, buf):
        r = [f"ds_read_b64_tr_b16 a[{WB[buf]+t*4+i*2}:{WB[buf]+t*4+i*2+1}], v{VT+t} offset:{slot*4096+i*2048}" for t in range(4) for i in range(2)]
        return [] if NOTR else r
    for r in range(ACC+32, ACC+128): a(f"v_mov_b32 v{r}, 0")
    stamp(a, 2)
    a("s_waitcnt vmcnt(44)")
    for mt in range(2):
        for t in range(4):
            d = ACC + (mt*4+t)*4
            a(f"v_lshlrev_b32 v{d}, 16, v{BI+2*t}\nv_and_b32 v{d+1}, 0xffff0000, v{BI+2*t}\nv_lshlrev_b32 v{d+2}, 16, v{BI+2*t+1}\nv_and_b32 v{d+3}, 0xffff0000, v{BI+2*t+1}")
    stamp(a, 3)
    for x in trs(0, 0): a(x)
    a("s_mov_b32 s39, 0")
    a.label("L2_loop")
    for s in range(4):
        buf = s & 1
        mfs = [f"v_mfma_f32_16x16x32_bf16 v[{ACC+(mt*4+t)*4}:{ACC+(mt*4+t)*4+3}], a[{WB[buf]+t*4}:{WB[buf]+t*4+3}], a[{HB+s*32+mt*4}:{HB+s*32+mt*4+3}], v[{ACC+(mt*4+t)*4}:{ACC+(mt*4+t)*4+3}]" for mt in range(8) for t in range(4)]
        f = {-1: ["s_waitcnt vmcnt(32) lgkmcnt(0)"]}
        if s == 0: f[-1].append("s_cmp_eq_u32 s39, 6\ns_cselect_b32 s26, 0, s26\ns_cselect_b32 s22, 0, s22")
        d = dma(s)
        f[-1].append(d[0][0])
        f[0] = [d[0][1], d[1][1]]; f[1] = [d[2][1]]; f[2] = [d[3][1]]
        for mt, x in enumerate(hld(s)): f.setdefault(mt*4+3, []).append(x)
        for n, x in enumerate(trs((s+1) % 4, buf ^ 1)): f.setdefault(4 + n + n//3, []).append(x)
        f[31].append("s_add_u32 s37, s37, 65536\ns_add_u32 s38, s38, 8192")
        if s == 3: f[31].append("s_add_u32 s39, s39, 1\ns_cmp_lt_u32 s39, 7")
        interleave(a, mfs, f)
    a("s_cbranch_scc1 L2_loop")
    stamp(a, 4)
    a("s_waitcnt vmcnt(0) lgkmcnt(0)")
    a("v_lshlrev_b32 v2, 4, v0\nv_add_u32 v4, s36, v2\ns_nop 4")
    for jp in range(1, 4):
        for q in range(8):
            d = ACC + (jp*8+q)*4
            a(f"ds_write_b128 v4, v[{d}:{d+3}] offset:{(jp-1)*8192+q*1024}")
    for jp in range(1, 4):
        a(f"s_sub_u32 s16, s3, {jp}\ns_and_b32 s16, s16, 3\ns_mul_i32 s16, s16, {WLDS}\nv_add_u32 v{8+jp}, s16, v2")
    a("s_waitcnt lgkmcnt(0)\ns_barrier")
    for q in range(8):
        for jp in range(1, 4):
            d = ACC + (jp*8+q)*4
            a(f"ds_read_b128 v[{d}:{d+3}], v{8+jp} offset:{(jp-1)*8192+q*1024}")
    a("v_and_b32 v4, 15, v0\nv_lshlrev_b32 v4, 11, v4\ns_lshl_b32 s16, s3, 16\nv_add_u32 v4, s16, v4\nv_and_b32 v5, 1, v3\nv_lshl_add_u32 v4, v5, 5, v4\nv_lshrrev_b32 v5, 1, v3\nv_lshl_add_u32 v4, v5, 4, v4\nv_add_u32 v5, 32768, v4")
    for qp in range(4):
        a(f"s_waitcnt lgkmcnt({min(15, 18-qp*6)})" if qp > 0 else "s_waitcnt lgkmcnt(15)")
        if qp == 0: pass
        o = 168 + qp*4
        for h in range(2):
            q = qp*2 + h
            d = ACC + q*4
            for e in (0, 2):
                for jp in range(1, 4):
                    a(f"v_pk_add_f32 v[{d+e}:{d+e+1}], v[{d+e}:{d+e+1}], v[{ACC+(jp*8+q)*4+e}:{ACC+(jp*8+q)*4+e+1}]")
            a(f"v_cvt_pk_bf16_f32 v{o+2*h}, v{d}, v{d+1}\nv_cvt_pk_bf16_f32 v{o+2*h+1}, v{d+2}, v{d+3}")
        a(f"s_nop 1\nv_permlane16_swap_b32 v{o}, v{o+2}\nv_permlane16_swap_b32 v{o+1}, v{o+3}")
        a(f"buffer_store_dwordx4 v[{o}:{o+3}], v{4+(qp>>1)}, s[32:35], 0 offen offset:{(qp&1)*64}")
    stamp(a, 5)
    if STAMP: a("s_waitcnt vmcnt(0)")
    stamp(a, 6); stamp_rt(a, 7)
    stamp_out(a, 8, 0x8100000)
    a.label("L2_end")
    return a.text()

def kern(name, body, vgpr, accum):
    return f""".globl {name}
.p2align 8
.type {name},@function
{name}:
{body}
    s_endpgm
""", f""".amdhsa_kernel {name}
  .amdhsa_next_free_vgpr {vgpr}
  .amdhsa_next_free_sgpr 102
  .amdhsa_accum_offset {accum}
  .amdhsa_group_segment_fixed_size 0
  .amdhsa_kernarg_size 64
  .amdhsa_user_sgpr_count 2
  .amdhsa_user_sgpr_kernarg_segment_ptr 1
  .amdhsa_system_sgpr_workgroup_id_x 1
.end_amdhsa_kernel
"""
k1, d1 = kern("g1_kernel", gemm1(), 512, 256)
k2, d2 = kern("g2_kernel", gemm2(), 512, 256)
hdr = "".join(l for l in open("cdna_kernels/" + NAME + ".s.ref").readlines()[:9])
out = hdr + f"""; @launch kernel=g1_kernel grid=(256,1,1) block=(256,1,1) lds=114688
; @launch kernel=g2_kernel grid=(256,1,1) block=(256,1,1) lds=98304
.amdgcn_target "amdgcn-amd-amdhsa--gfx950"
.text
{k1}{k2}.section .rodata,"a"
.p2align 6
{d1}.p2align 6
{d2}"""
open(sys.argv[1], "w").write(out)
```

```python
import sys
NAME = "standalone__dense_activation_squared_relu__prompt"
opts = dict(a.split("=") for a in sys.argv[2:])
STAMP = int(opts.get("stamp", 0))
NOMFMA = int(opts.get("nomfma", 0))
NOTR = int(opts.get("notr", 0))
HST = opts.get("hst", "")
HST = HST.replace("+", " ")

class A:
    def __init__(s): s.l = []
    def __call__(s, t):
        for x in t.strip("\n").split("\n"): s.l.append("    " + x.strip())
    def label(s, n): s.l.append(n + ":")
    def text(s): return "\n".join(s.l)

def interleave(a, mfmas, fillers):
    for x in fillers.get(-1, []): a(x)
    for i, m in enumerate(mfmas):
        a(m if not NOMFMA else "s_nop 0")
        for x in fillers.get(i, []): a(x)

def srd(a, d, lo, hi, nrec):
    a(f"s_mov_b32 s{d}, s{lo}\ns_and_b32 s{d+1}, s{hi}, 0xffff\ns_mov_b32 s{d+2}, {nrec}\ns_mov_b32 s{d+3}, 0x20000")

def stamp(a, i):
    if STAMP: a(f"s_memtime s[{70+2*i}:{71+2*i}]")
def stamp_rt(a, i):
    if STAMP: a(f"s_memrealtime s[{70+2*i}:{71+2*i}]")
def stamp_out(a, n, wsoff, ws=None):
    if not STAMP: return
    a("s_load_dwordx2 s[60:61], s[0:1], 56\ns_waitcnt lgkmcnt(0)")
    a(f"s_add_u32 s60, s60, {wsoff}\ns_addc_u32 s61, s61, 0")
    srd(a, 64, 60, 61, 0x100000)
    a("s_lshl_b32 s62, s2, 2\ns_add_u32 s62, s62, s3\ns_lshl_b32 s62, s62, 6\nv_mov_b32 v0, s62")
    for i in range(n):
        a(f"v_mov_b32 v1, s{70+2*i}\nbuffer_store_dword v1, v0, s[64:67], 0 offen offset:{4*i}")
    a("s_waitcnt vmcnt(0)")


O = lambda k, d: int(opts.get(k, d))
FL = lambda k, d="": opts.get(k, d).replace("+", " ")
LDS1 = 135168 + 4096
HOFF = 0x10000
XFL = 0x2080000
R2 = O("r2", 4); LDS2 = 16384*R2
FLAG = 0x2000000
XCH = 0x2100000
def spread(f, items, start, step_num, step_den):
    for n, x in enumerate(items): f.setdefault(start + n*step_num//step_den, []).append(x)
def adv(pos, cnt, base, WN):
    return [f"s_add_u32 s{pos}, s{pos}, 1\ns_cmp_eq_u32 s{pos}, {WN}", f"s_cselect_b32 s{pos}, 0, s{pos}\ns_add_u32 s{cnt}, s{cnt}, 1",
            f"s_cmp_eq_u32 s{cnt}, {WN}\ns_cselect_b32 s16, {WN}, 0", f"s_cselect_b32 s{cnt}, 0, s{cnt}\ns_add_u32 s{base}, s{base}, s16", f"s_add_u32 s16, s{base}, s{pos}"]
def advt(r, lim, inc, span):
    return [f"s_add_u32 s{r}, s{r}, {inc}\ns_cmp_ge_u32 s{r}, s{lim}", f"s_cselect_b32 s17, {span}, 0\ns_sub_u32 s{r}, s{r}, s17"]
def gemm1():
    a = A()
    R = 3; STG = 45056
    ACC = 16; WB = [0, 56]; XB = [112, 120]
    VD = 128; VX = 135; VT = 139; VXR = 145; BI = 152
    VD2 = 240; VH = 244; VT2 = 245; LB2 = 45056; OWN = 184
    WN = O("wn1", 16); SM = O("sm1", 4); SF = O("sf1", 2); WF = FL("w1f"); XF = FL("xf")
    stamp_rt(a, 0); stamp(a, 1)
    a("s_cmp_ge_u32 s2, 256\ns_cbranch_scc1 L1_end")
    a("s_load_dwordx4 s[4:7], s[0:1], 0\ns_load_dwordx4 s[8:11], s[0:1], 16\ns_load_dwordx4 s[88:91], s[0:1], 32\ns_load_dwordx4 s[44:47], s[0:1], 48")
    a("v_lshrrev_b32 v1, 6, v0\nv_and_b32 v0, 63, v0\ns_nop 0\nv_readfirstlane_b32 s3, v1")
    a("s_lshr_b32 s13, s2, 3\ns_and_b32 s18, s13, 3\ns_lshr_b32 s19, s13, 2")
    a("s_and_b32 s12, s2, 3\ns_lshl_b32 s12, s12, 2\ns_add_u32 s12, s12, s18")
    a("s_and_b32 s13, s2, 4\ns_lshl_b32 s13, s13, 1\ns_add_u32 s13, s13, s19")
    a(f"s_mul_i32 s40, s18, {SM}\ns_mul_i32 s41, s19, {SF}\ns_add_u32 s40, s40, s41\ns_and_b32 s40, s40, {WN-1}\ns_mov_b32 s41, 0\ns_mov_b32 s42, 0")
    a("s_mul_i32 s37, s40, 458752\ns_lshl_b32 s38, s40, 7")
    a("v_lshrrev_b32 v2, 3, v0\nv_lshrrev_b32 v3, 4, v0\nv_and_b32 v4, 7, v0\nv_xor_b32 v4, v4, v3\ns_lshl_b32 s16, s3, 16\nv_lshlrev_b32 v2, 11, v2\nv_add_u32 v2, s16, v2")
    a(f"v_lshl_add_u32 v{VX}, v4, 4, v2\nv_xor_b32 v4, 4, v4\nv_lshl_add_u32 v{VX+1}, v4, 4, v2\nv_add_u32 v{VX+2}, {2*15360}, v{VX}\nv_add_u32 v{VX+3}, {3*15360}, v{VX+1}\nv_add_u32 v{VX+1}, 15360, v{VX+1}")
    a("s_mov_b32 s15, 9363\ns_mul_i32 s16, s3, 16*7168")
    for i in range(7):
        a(f"v_add_u32 v2, {64*i}, v0\nv_mul_u32_u24 v7, s15, v2\nv_lshrrev_b32 v7, 18, v7\nv_mul_u32_u24 v4, 28, v7\nv_sub_u32 v4, v2, v4")
        a(f"v_lshrrev_b32 v5, 2, v7\nv_and_b32 v5, 2, v5\nv_xor_b32 v4, v4, v5\nv_mul_u32_u24 v7, 7168, v7\nv_lshl_add_u32 v7, v4, 4, v7")
        a(f"v_add_u32 v7, s16, v7\nv_subrev_u32 v{VD+i}, {(i&3)*1024}, v7")
    a("v_lshlrev_b32 v6, 3, v3")
    a("s_mul_i32 s36, s3, 7168\ns_lshl_b32 s43, s3, 12\ns_add_u32 s43, s43, 28672")
    a("s_waitcnt lgkmcnt(0)")
    a("s_lshl_b32 s16, s12, 18\ns_add_u32 s4, s4, s16\ns_addc_u32 s5, s5, 0")
    srd(a, 20, 4, 5, 262144)
    a("s_mul_i32 s16, s13, 448\ns_add_u32 s6, s6, s16\ns_addc_u32 s7, s7, 0\ns_sub_u32 s17, 7340032, s16")
    srd(a, 24, 6, 7, "s17")
    def lds(slot):
        r = []
        for i in range(4): r.append((f"s_add_u32 m0, s43, {slot*STG}" if i == 0 else "", f"buffer_load_dwordx4 v{VX+i}, s[20:23], s38 offen offset:{i*1024} {XF} lds"))
        for i in range(7):
            r.append((f"s_add_u32 m0, s36, {slot*STG+(i&4)*1024}" if i in (0, 4) else "", f"buffer_load_dwordx4 v{VD+i}, s[24:27], s37 offen offset:{(i&3)*1024} {WF} lds"))
        return r
    nxt = adv(40, 41, 42, WN) + ["s_mul_i32 s37, s16, 458752\ns_lshl_b32 s38, s16, 7"]
    def issue(l):
        for pre, x in l:
            if pre: a(pre + "\ns_nop 0")
            a(x)
    issue(lds(0))
    for x in nxt: a(x)
    a("s_mul_i32 s16, s13, 448\ns_add_u32 s8, s8, s16\ns_addc_u32 s9, s9, 0")
    srd(a, 28, 8, 9, 448)
    a(f"s_lshl_b32 s16, s3, 10\ns_add_u32 m0, s16, {3*STG}\nv_lshlrev_b32 v2, 4, v0\nv_add_u32 v6, m0, v6\nbuffer_load_dwordx4 v2, s[28:31], 0 offen lds")
    issue(lds(1))
    for x in nxt: a(x)
    srd(a, 48, 46, 47, 0x4000000)
    srd(a, 52, 10, 11, 7340032)
    srd(a, 56, 44, 45, 256)
    a("s_or_b32 s16, s2, s3\ns_cmp_eq_u32 s16, 0\ns_cbranch_scc0 L_nn0\ns_load_dwordx2 s[92:93], s[46:47], 0")
    a.label("L_nn0")
    a("s_lshr_b32 s14, s2, 2\ns_and_b32 s14, s14, 1")
    a("s_lshl_b32 s16, s19, 8\ns_lshl_b32 s17, s14, 7\ns_add_u32 s16, s16, s17\ns_add_u32 s88, s88, s16\ns_addc_u32 s89, s89, 0")
    srd(a, 28, 88, 89, 128)
    a("s_lshl_b32 s17, s12, 18\ns_add_u32 s16, s16, s17\ns_add_u32 s90, s90, s16\ns_addc_u32 s91, s91, 0\ns_sub_u32 s17, 4194304, s16")
    srd(a, 32, 90, 91, "s17")
    a(f"s_mul_i32 s16, s13, 7\ns_lshr_b32 s17, s3, 1\ns_add_u32 s17, s17, s16\ns_lshl_b32 s94, s17, 16\ns_mul_i32 s17, s14, 56\ns_add_u32 s17, s17, 56\ns_lshl_b32 s95, s17, 16")
    a(f"s_mul_i32 s15, s12, 112\ns_add_u32 s17, s17, s15\ns_lshl_b32 s98, s17, 13\ns_add_u32 s98, s98, {HOFF}\ns_add_u32 s16, s16, s15\ns_lshl_b32 s99, s16, 13\ns_add_u32 s99, s99, {HOFF}")
    a(f"s_add_u32 s96, s99, {6*8192}\ns_add_u32 s97, s99, {5*8192}")
    for x in advt(96, 98, 2*8192, 56*8192) + advt(97, 98, 2*8192, 56*8192): a(x)
    a("v_and_b32 v4, 15, v0\nv_lshlrev_b32 v5, 1, v3\nv_xor_b32 v4, v4, v5\ns_and_b32 s16, s3, 1\ns_lshl_b32 s16, s16, 15\ns_lshl_b32 s17, s19, 8\ns_add_u32 s16, s16, s17\nv_lshlrev_b32 v2, 11, v3\nv_add_u32 v2, s16, v2")
    a(f"v_lshl_add_u32 v{VD2}, v4, 4, v2\nv_xor_b32 v4, 8, v4\nv_lshl_add_u32 v{VD2+1}, v4, 4, v2\nv_add_u32 v{VD2+2}, {2*7168}, v{VD2}\nv_add_u32 v{VD2+3}, {3*7168}, v{VD2+1}\nv_add_u32 v{VD2+1}, 7168, v{VD2+1}")
    a(f"s_lshl_b32 s16, s3, 11\nv_lshlrev_b32 v2, 4, v0\nv_add_u32 v{VH}, s16, v2\ns_lshl_b32 s86, s3, 12\ns_add_u32 s86, s86, {LB2}")
    a(f"v_lshrrev_b32 v2, 2, v0\nv_and_b32 v4, 7, v2\ns_lshl_b32 s16, s14, 2\nv_xor_b32 v4, s16, v4\nv_lshlrev_b32 v2, 8, v2\nv_and_b32 v5, 3, v0\nv_lshl_add_u32 v2, v5, 3, v2\nv_add_u32 v2, {LB2}, v2")
    for t in range(8): a(f"v_xor_b32 v5, {t}, v4\nv_lshl_add_u32 v{VT2+t}, v5, 5, v2")
    a(f"s_and_b32 s16, s2, 7\ns_lshl_b32 s16, s16, 2\ns_add_u32 s16, s16, s18\ns_lshl_b32 s16, s16, 2\ns_add_u32 s16, s16, s3\ns_lshl_b32 s16, s16, 7\ns_add_u32 s87, s16, {FLAG}")
    a("v_and_b32 v11, 7, v0\nv_lshlrev_b32 v11, 3, v11\ns_lshl_b32 s16, s19, 3\nv_mov_b32 v9, s16\nv_mov_b32 v7, 0\nv_lshlrev_b32 v1, 3, v3")
    a("v_lshrrev_b32 v2, 2, v0\nv_and_b32 v2, 3, v2\nv_lshl_add_u32 v2, v3, 3, v2\nv_mul_u32_u24 v2, 448, v2\nv_and_b32 v4, 3, v0\nv_lshl_add_u32 v2, v4, 3, v2")
    a(f"v_and_b32 v4, 1, v3\nv_lshlrev_b32 v4, 5, v4\nv_add_u32 v{VT}, v2, v4\nv_xor_b32 v4, 32, v4\nv_add_u32 v{VT+1}, v2, v4")
    a(f"v_and_b32 v2, 15, v0\nv_lshrrev_b32 v4, 1, v2\nv_xor_b32 v4, v4, v3\nv_lshlrev_b32 v2, 7, v2\nv_lshl_add_u32 v2, v4, 4, v2\nv_add_u32 v{VXR}, s43, v2\nv_xor_b32 v{VXR+1}, 64, v{VXR}")
    for sl in (1, 2):
        for p in (0, 1): a(f"v_add_u32 v{VT+2*sl+p}, {sl*STG}, v{VT+p}\nv_add_u32 v{VXR+2*sl+p}, {sl*STG}, v{VXR+p}")
    a("s_and_b32 s16, s2, 4\ns_lshl_b32 s16, s16, 5\ns_and_b32 s17, s2, 3\ns_lshl_b32 s17, s17, 5\ns_add_u32 s16, s16, s17\ns_lshr_b32 s17, s2, 3\ns_add_u32 s16, s16, s17\ns_lshl_b32 s16, s16, 2\ns_add_u32 s16, s16, s3\ns_mul_i32 s16, s16, 7168")
    a("v_min_u32 v8, 55, v0\nv_lshlrev_b32 v8, 7, v8\nv_add_u32 v8, s16, v8")
    def rds(slot, j):
        r = [f"ds_read_b128 a[{XB[j]+mt*4}:{XB[j]+mt*4+3}], v{VXR+2*slot+j} offset:{mt*2048}" for mt in range(2)]
        for t in range(14):
            for i in range(2):
                d = WB[j] + t*4 + i*2
                r.append(f"ds_read_b64_tr_b16 a[{d}:{d+1}], v{VT+slot*2+(t&1)} offset:{j*32*448 + i*4*448 + (t & ~1)*32}")
        return [] if NOTR else r
    a("s_waitcnt vmcnt(11)\ns_barrier")
    for t in range(14): a(f"ds_read_b64 v[{BI+2*t}:{BI+2*t+1}], v6 offset:{32*t}")
    for x in rds(0, 0)[:15]: a(x)
    a("s_waitcnt lgkmcnt(13)")
    for x in rds(0, 0)[15:]: a(x)
    for t in range(14):
        if t % 3 == 0: issue(lds(2)[t//3:t//3+1])
        for mt in range(2):
            d = ACC + (t*2+mt)*4
            a(f"v_lshlrev_b32 v{d}, 16, v{BI+2*t}\nv_and_b32 v{d+1}, 0xffff0000, v{BI+2*t}\nv_lshlrev_b32 v{d+2}, 16, v{BI+2*t+1}\nv_and_b32 v{d+3}, 0xffff0000, v{BI+2*t+1}")
    a("s_or_b32 s16, s2, s3\ns_cmp_eq_u32 s16, 0\ns_cbranch_scc0 L_nn1\ns_waitcnt lgkmcnt(0)\ns_add_u32 s92, s92, 1\ns_or_b32 s93, s93, 1\nv_mov_b32 v12, s92\nv_mov_b32 v13, s93")
    a("buffer_store_dwordx2 v[12:13], v7, s[56:59], 0 offen sc1\nbuffer_store_dwordx2 v[12:13], v7, s[48:51], 0 offen")
    a.label("L_nn1")
    stamp(a, 2)
    a("s_mov_b32 s39, 0")
    def mf(j):
        return [f"v_mfma_f32_16x16x32_bf16 v[{ACC+(t*2+mt)*4}:{ACC+(t*2+mt)*4+3}], a[{WB[j]+t*4}:{WB[j]+t*4+3}], a[{XB[j]+mt*4}:{XB[j]+mt*4+3}], v[{ACC+(t*2+mt)*4}:{ACC+(t*2+mt)*4+3}]" for t in range(14) for mt in range(2)]
    def put(f, l, start, step):
        for n, (pre, x) in enumerate(l):
            if pre: f.setdefault(start+n*step-1, []).append(pre)
            f.setdefault(start+n*step, []).append(x)
    def stage(s, ld0, ld1, last=False, vm=11, extra=None, x0=(), x1=()):
        f = {-1: ["s_waitcnt lgkmcnt(0)"]}
        spread(f, rds(s, 1), 0, 4, 5)
        if ld0:
            put(f, lds((s+2) % R)[5:], 1, 4)
            spread(f, nxt, 22, 1, 1)
        put(f, x0, 2, 3)
        interleave(a, mf(0), f)
        f = {-1: ["s_waitcnt lgkmcnt(0)" if last else f"s_waitcnt vmcnt({vm}) lgkmcnt(0)\ns_barrier"]}
        if not last: spread(f, rds((s+1) % R, 0), 0, 4, 5)
        if ld1: put(f, lds(s)[:5], 2, 5)
        if extra: f.setdefault(26, []).append(extra)
        put(f, x1, 2, 3)
        interleave(a, mf(1), f)
    a.label("L1_loop")
    for s in range(R): stage(s, 1, 1, extra=("s_add_u32 s39, s39, 1\ns_cmp_lt_u32 s39, 4" if s == R-1 else None))
    a("s_cbranch_scc1 L1_loop")

    A2 = 16; WB2 = [0, 32]; HB = 64; B2 = 152; RX = 104
    WF2 = FL("w2f"); HF = FL("hf", "sc1"); HS = FL("hs", "sc1")
    nW = [("", x) for x in advt(94, 95, 2 << 16, 56 << 16)]
    nH = [[("", x) for x in advt(96+j, 98, 2*8192, 56*8192)] for j in range(2)]
    def w2(slot, r=range(4)): return [(f"s_add_u32 m0, s86, {slot*16384}" if i == 0 else "", f"buffer_load_dwordx4 v{VD2+i}, s[52:55], s94 offen offset:{i*1024} {WF2} lds") for i in r]
    def hl(slot, j): return [("", f"buffer_load_dwordx4 a[{HB+slot*16+(j*2+mt)*4}:{HB+slot*16+(j*2+mt)*4+3}], v{VH}, s[48:51], s{96+j} offen offset:{mt*1024} {HF}") for mt in range(2)]
    misc = [("", f"buffer_load_dword v10, v8, s[52:55], 0 offen"), ("", "buffer_load_dwordx2 v[12:13], v7, s[56:59], 0 offen sc1")] + [("", f"buffer_load_dwordx2 v[{B2+2*t}:{B2+2*t+1}], v1, s[28:31], 0 offen offset:{32*t}") for t in range(4)]
    stage(0, 1, 1); stage(1, 1, 0, x1=w2(0)+nW+misc[:2]); stage(2, 0, 0, vm=10, x0=w2(1)+nW, x1=w2(2)+nW); stage(0, 0, 0, last=True, x0=w2(3)+nW, x1=misc[2:])
    stamp(a, 3)
    def rds2(slot, j): return [f"ds_read_b64_tr_b16 a[{WB2[j]+t*4+i*2}:{WB2[j]+t*4+i*2+1}], v{VT2+t} offset:{slot*16384+j*8192+i*4096}" for t in range(8) for i in range(2)]
    for u in range(7):
        for mt in range(2):
            o = OWN + (u*2+mt)*4
            for h in range(2):
                d = ACC + ((2*u+h)*2+mt)*4
                for e in range(4): a(f"v_max_f32 v{d+e}, 0, v{d+e}")
                a(f"v_pk_mul_f32 v[{d}:{d+1}], v[{d}:{d+1}], v[{d}:{d+1}]\nv_pk_mul_f32 v[{d+2}:{d+3}], v[{d+2}:{d+3}], v[{d+2}:{d+3}]")
                a(f"v_cvt_pk_bf16_f32 v{o+2*h}, v{d}, v{d+1}\nv_cvt_pk_bf16_f32 v{o+2*h+1}, v{d+2}, v{d+3}")
            a(f"buffer_store_dwordx4 v[{o}:{o+3}], v{VH}, s[48:51], s99 offen offset:{mt*1024} {HS}")
        a("s_add_u32 s99, s99, 8192")
        if u == 5:
            a("s_waitcnt vmcnt(12)\ns_barrier")
            for x in rds2(0, 0): a(x)
    for t in range(4):
        for mt in range(2):
            d = A2 + (t*2+mt)*4
            a(f"v_lshlrev_b32 v{d}, 16, v{B2+2*t}\nv_and_b32 v{d+1}, 0xffff0000, v{B2+2*t}\nv_lshlrev_b32 v{d+2}, 16, v{B2+2*t+1}\nv_and_b32 v{d+3}, 0xffff0000, v{B2+2*t+1}")
    for r in range(A2+32, A2+64): a(f"v_mov_b32 v{r}, 0")
    a("v_readfirstlane_b32 s93, v13\ns_mov_b32 s39, 0\ns_cmp_lg_u32 s93, 0\ns_cbranch_scc1 L_nok")
    a.label("L_nsp")
    a("s_sleep 2\nbuffer_load_dwordx2 v[12:13], v7, s[56:59], 0 offen sc1\ns_add_u32 s39, s39, 1\ns_waitcnt vmcnt(0)\nv_readfirstlane_b32 s93, v13\ns_lshr_b32 s16, s39, 19\ns_or_b32 s16, s16, s93\ns_cmp_eq_u32 s16, 0\ns_cbranch_scc1 L_nsp")
    a.label("L_nok")
    def mf2(s, j, own=None, order=range(8)):
        hr = lambda mt: (f"v[{OWN+(own*2+mt)*4}:{OWN+(own*2+mt)*4+3}]" if own is not None else f"a[{HB+s*16+(j*2+mt)*4}:{HB+s*16+(j*2+mt)*4+3}]")
        return [f"v_mfma_f32_16x16x32_bf16 v[{A2+(t*2+mt)*4}:{A2+(t*2+mt)*4+3}], a[{WB2[j]+t*4}:{WB2[j]+t*4+3}], {hr(mt)}, v[{A2+(t*2+mt)*4}:{A2+(t*2+mt)*4+3}]" for t in order for mt in range(2)]
    def putm(f, l):
        nl_ = sum(1 for p, x in l if x.startswith("buffer")); step = 4 if nl_ <= 4 else 2
        pos = 1 - step; sub = 0
        for pre, x in l:
            if x.startswith("buffer"):
                pos += step; sub = 0
                if pre: f.setdefault(pos-1, []).append(pre)
                f.setdefault(pos, []).append(x)
            else:
                sub += 1; f.setdefault(min(15, pos + (sub if step == 4 else 0)), []).append(x)
    def ph(s, j, pre, l, own=None, last=False, extra=None):
        f = {-1: [pre]}
        if not last: spread(f, rds2(s, 1) if j == 0 else rds2((s+1) % 4, 0), 0, 3, 4)
        putm(f, l)
        if extra: f.setdefault(15, []).append(extra)
        interleave(a, mf2(s, j, own, [4,5,6,7,0,1,2,3] if last else range(8)), f)
    L0 = "s_waitcnt lgkmcnt(0)"; LB = L0 + "\ns_barrier"
    poll = f"buffer_load_dwordx2 v[14:15], v11, s[48:51], s87 offen sc1"
    ph(0, 0, L0, [], 0); ph(0, 1, LB, w2(0)+nW, 1)
    ph(1, 0, "s_waitcnt vmcnt(4) lgkmcnt(0)\nbuffer_store_dwordx2 v[12:13], v9, s[48:51], s87 offen sc1", [], 2); ph(1, 1, LB, w2(1)+nW, 3)
    ph(2, 0, L0 + "\n" + poll, [], 4)
    a("s_mov_b32 s39, 0\ns_branch L_pc")
    a.label("L_pl")
    a("s_sleep 1\n" + poll + "\ns_add_u32 s39, s39, 1\ns_cmp_gt_u32 s39, 0x80000\ns_cbranch_scc1 L_pd")
    a.label("L_pc")
    a("s_waitcnt vmcnt(0)\nv_cmp_ne_u64 vcc, v[14:15], v[12:13]\ns_cbranch_vccnz L_pl")
    a.label("L_pd")
    stamp(a, 4)
    issue(hl(3, 1)+nH[1]+hl(0, 0)+nH[0]+hl(0, 1)+nH[1]+hl(1, 0)+nH[0]+hl(1, 1)+nH[1])
    ph(2, 1, LB, w2(2)+nW+hl(2, 0)+nH[0]+hl(2, 1)+nH[1], 5)
    ph(3, 0, L0, [], 6)
    ha = lambda s: w2(s, (0, 1)) + hl(s, 0) + nH[0]
    hb = lambda s: w2(s, (2, 3)) + nW + hl(s, 1) + nH[1]
    ph(3, 1, "s_waitcnt vmcnt(12) lgkmcnt(0)\ns_barrier", ha(3))
    a("s_mov_b32 s39, 0")
    a.label("L2_loop")
    for s in range(4):
        ph(s, 0, L0, hb((s-1) % 4))
        ph(s, 1, "s_waitcnt vmcnt(16) lgkmcnt(0)\ns_barrier", ha(s), extra=("s_add_u32 s39, s39, 1\ns_cmp_lt_u32 s39, 5" if s == 3 else None))
    a("s_cbranch_scc1 L2_loop")
    for s in range(4):
        ph(s, 0, L0, hb(3) if s == 0 else [])
        ph(s, 1, L0 if s == 3 else f"s_waitcnt vmcnt({16-8*s}) lgkmcnt(0)\ns_barrier", [], last=(s == 3))
    stamp(a, 5)
    a(f"s_lshl_b32 s16, s2, 2\ns_add_u32 s16, s16, s3\ns_xor_b32 s17, s16, 16\ns_lshl_b32 s18, s17, 13\ns_add_u32 s18, s18, {XCH}\ns_add_u32 s19, s18, 4096\nv_lshlrev_b32 v2, 4, v0")
    for q in range(8): a(f"buffer_store_dwordx4 v[{A2+32+q*4}:{A2+32+q*4+3}], v2, s[48:51], s{18+(q>>2)} offen offset:{(q&3)*1024} sc1")
    a(f"s_lshl_b32 s17, s17, 7\ns_add_u32 s17, s17, {XFL}")
    a(f"s_lshl_b32 s18, s16, 13\ns_add_u32 s18, s18, {XCH}\ns_add_u32 s19, s18, 4096\ns_lshl_b32 s16, s16, 7\ns_add_u32 s16, s16, {XFL}")
    a("v_and_b32 v4, 15, v0\nv_lshlrev_b32 v4, 11, v4\ns_lshl_b32 s15, s3, 16\nv_add_u32 v4, s15, v4\nv_and_b32 v5, 1, v3\nv_lshl_add_u32 v4, v5, 5, v4\nv_lshrrev_b32 v5, 1, v3\nv_lshl_add_u32 v4, v5, 4, v4\nv_add_u32 v5, 32768, v4")
    a("s_waitcnt vmcnt(0)\nbuffer_store_dwordx2 v[12:13], v7, s[48:51], s17 offen sc1\ns_mov_b32 s39, 0")
    a.label("L_xl")
    a("s_sleep 1\nbuffer_load_dwordx2 v[14:15], v7, s[48:51], s16 offen sc1\ns_add_u32 s39, s39, 1\ns_cmp_gt_u32 s39, 0x80000\ns_cbranch_scc1 L_xd\ns_waitcnt vmcnt(0)\nv_cmp_ne_u64 vcc, v[14:15], v[12:13]\ns_cbranch_vccnz L_xl")
    a.label("L_xd")
    for q in [0, 2, 4, 6, 1, 3, 5, 7]: a(f"buffer_load_dwordx4 v[{A2+32+q*4}:{A2+32+q*4+3}], v2, s[48:51], s{18+(q>>2)} offen offset:{(q&3)*1024} sc1")
    for qp in range(4):
        mt, tp = qp >> 1, qp & 1
        a(f"s_waitcnt vmcnt({6-qp})")
        o = RX + qp*4
        for h in range(2):
            d = A2 + ((2*tp+h)*2+mt)*4
            for e in (0, 2): a(f"v_pk_add_f32 v[{d+e}:{d+e+1}], v[{d+e}:{d+e+1}], v[{d+32+e}:{d+32+e+1}]")
            a(f"v_cvt_pk_bf16_f32 v{o+2*h}, v{d}, v{d+1}\nv_cvt_pk_bf16_f32 v{o+2*h+1}, v{d+2}, v{d+3}")
        a(f"s_nop 1\nv_permlane16_swap_b32 v{o}, v{o+2}\nv_permlane16_swap_b32 v{o+1}, v{o+3}")
        a(f"buffer_store_dwordx4 v[{o}:{o+3}], v{4+mt}, s[32:35], 0 offen offset:{tp*64}")
    if STAMP: a("s_waitcnt vmcnt(0)")
    stamp(a, 6); stamp_rt(a, 7)
    stamp_out(a, 8, 0x8000000)
    a.label("L1_end")
    return a.text()

def kern(name, body, vgpr, accum):
    return f""".globl {name}
.p2align 8
.type {name},@function
{name}:
{body}
    s_endpgm
""", f""".amdhsa_kernel {name}
  .amdhsa_next_free_vgpr {vgpr}
  .amdhsa_next_free_sgpr 102
  .amdhsa_accum_offset {accum}
  .amdhsa_group_segment_fixed_size 0
  .amdhsa_kernarg_size 64
  .amdhsa_user_sgpr_count 2
  .amdhsa_user_sgpr_kernarg_segment_ptr 1
  .amdhsa_system_sgpr_workgroup_id_x 1
.end_amdhsa_kernel
"""
k1, d1 = kern(NAME + "_kernel", gemm1(), 512, 256)
hdr = "".join(l for l in open("cdna_kernels/" + NAME + ".s.ref").readlines()[:9])
out = hdr + f"""; @launch grid=(256,1,1) block=(256,1,1) lds={LDS1}
.amdgcn_target "amdgcn-amd-amdhsa--gfx950"
.text
{k1}.section .rodata,"a"
.p2align 6
{d1}"""
open(sys.argv[1], "w").write(out)
```

```python
import sys
NAME = "standalone__dense_activation_squared_relu__prompt"
opts = dict(a.split("=") for a in sys.argv[2:])
STAMP = int(opts.get("stamp", 0))
NOMFMA = int(opts.get("nomfma", 0))
NOTR = int(opts.get("notr", 0))
HST = opts.get("hst", "")
HST = HST.replace("+", " ")

class A:
    def __init__(s): s.l = []
    def __call__(s, t):
        for x in t.strip("\n").split("\n"): s.l.append("    " + x.strip())
    def label(s, n): s.l.append(n + ":")
    def text(s): return "\n".join(s.l)

def interleave(a, mfmas, fillers):
    for x in fillers.get(-1, []): a(x)
    for i, m in enumerate(mfmas):
        a(m if not NOMFMA else "s_nop 0")
        for x in fillers.get(i, []): a(x)

def srd(a, d, lo, hi, nrec):
    a(f"s_mov_b32 s{d}, s{lo}\ns_and_b32 s{d+1}, s{hi}, 0xffff\ns_mov_b32 s{d+2}, {nrec}\ns_mov_b32 s{d+3}, 0x20000")

def stamp(a, i):
    if STAMP: a(f"s_memtime s[{70+2*i}:{71+2*i}]")
def stamp_rt(a, i):
    if STAMP: a(f"s_memrealtime s[{70+2*i}:{71+2*i}]")
def stamp_out(a, n, wsoff, ws=None):
    if not STAMP: return
    a("s_load_dwordx2 s[60:61], s[0:1], 56\ns_waitcnt lgkmcnt(0)")
    a(f"s_add_u32 s60, s60, {wsoff}\ns_addc_u32 s61, s61, 0")
    srd(a, 64, 60, 61, 0x100000)
    a("s_lshl_b32 s62, s2, 2\ns_add_u32 s62, s62, s3\ns_lshl_b32 s62, s62, 6\nv_mov_b32 v0, s62")
    for i in range(n):
        a(f"v_mov_b32 v1, s{70+2*i}\nbuffer_store_dword v1, v0, s[64:67], 0 offen offset:{4*i}")
    a("s_waitcnt vmcnt(0)")


O = lambda k, d: int(opts.get(k, d))
FL = lambda k, d="": opts.get(k, d).replace("+", " ")
LDS1 = 141312
HOFF = 0x10000
XFL = 0x2080000
R2 = O("r2", 4); LDS2 = 16384*R2
FLAG = 0x2000000
XCH = 0x2100000
def spread(f, items, start, step_num, step_den):
    for n, x in enumerate(items): f.setdefault(start + n*step_num//step_den, []).append(x)
def adv(pos, cnt, base, WN):
    return [f"s_add_u32 s{pos}, s{pos}, 1\ns_cmp_eq_u32 s{pos}, {WN}", f"s_cselect_b32 s{pos}, 0, s{pos}\ns_add_u32 s{cnt}, s{cnt}, 1",
            f"s_cmp_eq_u32 s{cnt}, {WN}\ns_cselect_b32 s16, {WN}, 0", f"s_cselect_b32 s{cnt}, 0, s{cnt}\ns_add_u32 s{base}, s{base}, s16", f"s_add_u32 s16, s{base}, s{pos}"]
SEL = opts.get("sp", "l1,e1,pd,e2").split(",")
def pt(a, n):
    if n in SEL: stamp(a, 2 + SEL.index(n))
def advt(r, lim, inc, span):
    return [f"s_add_u32 s{r}, s{r}, {inc}\ns_cmp_ge_u32 s{r}, s{lim}", f"s_cselect_b32 s17, {span}, 0\ns_sub_u32 s{r}, s{r}, s17"]

WS = [0, 28672, 106496]; XS = [57344, 73728, 90112]; LB2 = 73728; LBI = 139264
def issue(a, l):
    for pre, x in l:
        if pre: a(pre + "\ns_nop 0")
        a(x)
def kmap(v, dst, own, sh, base=None):
    return f"s_cmp_ge_u32 s{v}, s{own}\ns_cselect_b32 s17, 7, 0\ns_add_u32 s17, s17, s{v}\ns_lshl_b32 s{dst}, s17, {sh}" + (f"\ns_add_u32 s{dst}, s{dst}, s{base}" if base else "")

def producer(a):
    VD = 16; VX = 24; VD2 = 28
    a("s_sub_u32 s3, s3, 4")
    a("v_lshrrev_b32 v2, 3, v0\nv_and_b32 v4, 7, v0\nv_xor_b32 v4, v4, v3\ns_lshl_b32 s16, s3, 16\nv_lshlrev_b32 v2, 11, v2\nv_add_u32 v2, s16, v2")
    a(f"v_lshl_add_u32 v{VX}, v4, 4, v2\nv_xor_b32 v4, 4, v4\nv_lshl_add_u32 v{VX+1}, v4, 4, v2\nv_add_u32 v{VX+2}, {2*15360}, v{VX}\nv_add_u32 v{VX+3}, {3*15360}, v{VX+1}\nv_add_u32 v{VX+1}, 15360, v{VX+1}")
    a("s_mul_i32 s36, s3, 7168\ns_lshl_b32 s43, s3, 12\ns_mov_b32 s15, 9363\ns_mul_i32 s40, s3, 16*7168\ns_lshl_b32 s16, s12, 18\ns_mul_i32 s41, s13, 448")
    WN = O("wn1", 1)
    a(f"s_mul_i32 s60, s18, {O('sm1', 0)}\ns_mul_i32 s61, s19, {O('sf1', 0)}\ns_add_u32 s60, s60, s61\ns_and_b32 s60, s60, {WN-1}\ns_mov_b32 s61, 0\ns_mov_b32 s62, 0\ns_mul_i32 s37, s60, 458752\ns_lshl_b32 s38, s60, 7")
    a("s_waitcnt lgkmcnt(0)")
    a("s_add_u32 s20, s4, s16\ns_addc_u32 s21, s5, 0\ns_and_b32 s21, s21, 0xffff\ns_mov_b32 s22, 262144\ns_mov_b32 s23, 0x20000")
    def lds(slot):
        r = [(f"s_add_u32 m0, s43, {XS[slot]}" if i == 0 else "", f"buffer_load_dwordx4 v{VX+i}, s[20:23], s38 offen offset:{i*1024} lds") for i in range(4)]
        return r + [(f"s_add_u32 m0, s36, {WS[slot]+(i&4)*1024}" if i in (0, 4) else "", f"buffer_load_dwordx4 v{VD+i}, s[24:27], s37 offen offset:{(i&3)*1024} lds") for i in range(7)]
    issue(a, lds(0)[:4])
    a("s_add_u32 s24, s6, s41\ns_addc_u32 s25, s7, 0\ns_and_b32 s25, s25, 0xffff\ns_sub_u32 s26, 7340032, s41\ns_mov_b32 s27, 0x20000")
    for i in range(7):
        a(f"v_add_u32 v2, {64*i}, v0\nv_mul_u32_u24 v7, s15, v2\nv_lshrrev_b32 v7, 18, v7\nv_mul_u32_u24 v4, 28, v7\nv_sub_u32 v4, v2, v4")
        a(f"v_lshrrev_b32 v5, 2, v7\nv_and_b32 v5, 2, v5\nv_xor_b32 v4, v4, v5\nv_mul_u32_u24 v7, 7168, v7\nv_lshl_add_u32 v7, v4, 4, v7")
        a(f"v_add_u32 v7, s40, v7\nv_subrev_u32 v{VD+i}, {(i&3)*1024}, v7")
        issue(a, lds(0)[4+i:5+i])
        if i == O("pfat", 2):
            a("s_lshl_b32 s42, s2, 2\ns_add_u32 s42, s42, s3\ns_lshl_b32 s16, s42, 12\ns_add_u32 s28, s4, s16\ns_addc_u32 s29, s5, 0")
            a(f"s_mul_i32 s16, s42, 896\ns_add_u32 s16, s16, {PF0//2*917504}\ns_add_u32 s30, s6, s16\ns_addc_u32 s31, s7, 0")
            for x in pf(O("q0", 11)): a(x)
    nx = "s_add_u32 s37, s37, 458752\ns_add_u32 s38, s38, 128"
    if WN > 1: nx = "\n".join(adv(60, 61, 62, WN)) + "\ns_mul_i32 s37, s16, 458752\ns_lshl_b32 s38, s16, 7"
    srd(a, 48, 4, 5, 4194304); srd(a, 56, 6, 7, 7340032)
    VTS = dict((int(z.split(":")[0]), tuple(map(int, z.split(":")[1:]))) for z in opts.get("vt", "").split(",") if z)
    def vt(k):
        if k not in VTS: return 0
        s0, s1 = VTS[k]; n1 = s1 - s0; nl = (n1*3584 + 1023)//1024
        a(f"v_min_u32 v2, {2*n1-1}, v0\nv_and_b32 v4, 1, v2\nv_lshrrev_b32 v2, 1, v2\nv_lshlrev_b32 v2, 7, v2\nv_lshl_add_u32 v2, v4, 11, v2\ns_lshl_b32 s16, s42, 12\nbuffer_load_dword v8, v2, s[48:51], s16 offen offset:{128*s0}")
        a(f"v_min_u32 v2, {nl-1}, v0\nv_lshlrev_b32 v2, 7, v2\ns_mul_i32 s16, s42, {n1*448}\ns_and_b32 s16, s16, 0xffffff80\ns_add_u32 s16, s16, {458752*s0}\nbuffer_load_dword v9, v2, s[56:59], s16 offen")
        return 2
    NT = vt(0)
    a(nx); issue(a, lds(1)); a(nx)
    n1_ = vt(1); NT += n1_
    srd(a, 52, 10, 11, 7340032)
    a("v_and_b32 v4, 15, v0\nv_lshlrev_b32 v5, 1, v3\nv_xor_b32 v4, v4, v5\ns_and_b32 s16, s3, 1\ns_lshl_b32 s16, s16, 15\ns_lshl_b32 s17, s19, 8\ns_add_u32 s16, s16, s17\nv_lshlrev_b32 v2, 11, v3\nv_add_u32 v2, s16, v2")
    a(f"v_lshl_add_u32 v{VD2}, v4, 4, v2\nv_xor_b32 v4, 8, v4\nv_lshl_add_u32 v{VD2+1}, v4, 4, v2\nv_add_u32 v{VD2+2}, {2*7168}, v{VD2}\nv_add_u32 v{VD2+3}, {3*7168}, v{VD2+1}\nv_add_u32 v{VD2+1}, 7168, v{VD2+1}")
    a(f"s_waitcnt vmcnt({11+NT})\ns_barrier")
    a("s_lshl_b32 s16, s12, 2\ns_add_u32 s16, s16, s3\ns_lshr_b32 s17, s16, 1\ns_lshl_b32 s17, s17, 11\ns_and_b32 s16, s16, 1\ns_lshl_b32 s16, s16, 7\ns_add_u32 s16, s16, s17\ns_lshl_b32 s17, s19, 8\ns_add_u32 s16, s16, s17\ns_add_u32 s32, s10, s16\ns_addc_u32 s33, s11, 0")
    a(f"s_mul_i32 s94, s13, 7\ns_mul_i32 s95, s14, 56\ns_lshr_b32 s97, s3, 1\ns_add_u32 s96, s95, s97\ns_sub_u32 s96, s96, 1\ns_add_u32 s43, s43, 0\ns_lshl_b32 s86, s3, 12\ns_add_u32 s86, s86, {LB2}")
    def mix(l, q):
        p = pf(q); k = 0
        for n, it in enumerate(l):
            issue(a, [it])
            while k < len(p) and k < (n+1)*len(p)//len(l): a(p[k]); k += 1
    def w2(st):
        if st < 3: pre = f"s_add_u32 s17, s94, s97\ns_add_u32 s17, s17, {2*st}\ns_lshl_b32 s98, s17, 16"
        elif st == 3: pre = kmap(96, 98, 94, 16) + f"\ns_add_u32 s17, s94, 6\ns_lshl_b32 s17, s17, 16\ns_cmp_eq_u32 s97, 0\ns_cselect_b32 s98, s17, s98\ns_add_u32 s96, s96, 2"
        else: pre = kmap(96, 98, 94, 16) + "\ns_add_u32 s96, s96, 2"
        return [(pre + f"\ns_add_u32 m0, s86, {(st%4)*16384}" if i == 0 else "", f"buffer_load_dwordx4 v{VD2+i}, s[52:55], s98 offen offset:{i*1024} lds") for i in range(4)]
    QS = O("qs", 5)
    mix(lds(2), O("q1", 6)); a(nx)
    a("s_mul_i32 s16, s42, 7168\nv_min_u32 v10, 55, v0\nv_lshlrev_b32 v10, 7, v10\nv_add_u32 v10, s16, v10")
    TW = O("tw", 15); prev = n1_; cur = vt(2)
    for s in range(15):
        a(f"s_waitcnt vmcnt({(11 if s < 14 else 4) + prev + cur})\ns_barrier")
        prev = cur; cur = 0
        if s < 13:
            mix(lds(s % 3), QS); a(nx); cur = vt(s+3)
            if s+3 == TW: a("buffer_load_dword v11, v10, s[52:55], 0 offen"); cur += 1
        elif s == 13: mix(w2(0), QS)
        else: mix(w2(1)+w2(2)+w2(3), O("q2", 20))
    a("s_waitcnt vmcnt(12)\ns_barrier")
    for s in range(27):
        a(f"s_waitcnt vmcnt({4*min(2, 26-s)})\ns_barrier")
        if s < 24: mix(w2(s+4), O("q3", 3))
    assert not PFL, len(PFL)
    a("s_waitcnt lgkmcnt(0)\ns_endpgm")
PF0 = O("pf0", 16)
PFL = []
for p in range(PF0//2, 8):
    PFL += [f"s_load_dword s34, s[28:29], {r*2048 + 2*p*128 + e*64}" for e in range(4) for r in range(2)]
    PFL += [f"s_load_dword s34, s[30:31], {i*64}" for i in range(13)] + ["s_load_dword s34, s[30:31], 832\ns_add_u32 s30, s30, 917504\ns_addc_u32 s31, s31, 0"]
L2_ = "s_add_u32 s35, s35, 64\ns_load_dword s34, s[32:33], s35"
for q in range(O("pw2", 0)):
    PFL += [f"s_add_u32 s17, s94, {q}\ns_lshl_b32 s35, s17, 16\ns_load_dword s34, s[32:33], s35" if q < 7 else kmap(95, 35, 94, 16) + "\ns_load_dword s34, s[32:33], s35\ns_add_u32 s95, s95, 1", L2_]
def pf(n):
    r = PFL[:n]; del PFL[:n]; return r

def fused():
    a = A()
    ACC = 16; WB = [0, 56]; XB = [112, 120]; VT = 10; VXR = 14
    stamp_rt(a, 0); stamp(a, 1)
    a("s_cmp_ge_u32 s2, 256\ns_cbranch_scc1 L1_end")
    a("s_load_dwordx4 s[4:7], s[0:1], 0\ns_load_dwordx4 s[8:11], s[0:1], 16\ns_load_dwordx4 s[88:91], s[0:1], 32\ns_load_dwordx4 s[44:47], s[0:1], 48")
    a("v_lshrrev_b32 v1, 6, v0\nv_and_b32 v0, 63, v0\ns_lshr_b32 s13, s2, 3\nv_readfirstlane_b32 s3, v1\nv_lshrrev_b32 v3, 4, v0")
    a("s_and_b32 s18, s13, 3\ns_lshr_b32 s19, s13, 2")
    a("s_and_b32 s12, s2, 3\ns_lshl_b32 s12, s12, 2\ns_add_u32 s12, s12, s18")
    a("s_and_b32 s13, s2, 4\ns_lshr_b32 s14, s13, 2\ns_lshl_b32 s13, s13, 1\ns_add_u32 s13, s13, s19")
    a("s_cmp_lt_u32 s3, 4\ns_cbranch_scc1 L_main")
    producer(a)
    a.label("L_main")
    a(f"s_lshl_b32 s16, s3, 9\ns_add_u32 m0, s16, {LBI}\nv_lshlrev_b32 v2, 2, v0\nv_lshlrev_b32 v6, 3, v3\nv_add_u32 v6, m0, v6\ns_mul_i32 s16, s13, 448")
    a("s_waitcnt lgkmcnt(0)\ns_add_u32 s8, s8, s16\ns_addc_u32 s9, s9, 0")
    srd(a, 28, 8, 9, 448)
    a("buffer_load_dword v2, s[28:31], 0 offen lds\nbuffer_load_dword v2, s[28:31], 0 offen offset:256 lds")
    srd(a, 48, 46, 47, 0x4000000); srd(a, 56, 44, 45, 256)
    a("v_mov_b32 v7, 0\ns_or_b32 s16, s2, s3\ns_cmp_eq_u32 s16, 0\ns_cbranch_scc0 L_nn0\ns_load_dwordx2 s[92:93], s[46:47], 0\ns_waitcnt lgkmcnt(0)\ns_add_u32 s92, s92, 1\ns_or_b32 s93, s93, 1\nv_mov_b32 v4, s92\nv_mov_b32 v5, s93")
    a("s_waitcnt vmcnt(0)\nbuffer_store_dwordx2 v[4:5], v7, s[56:59], 0 offen sc1\nbuffer_store_dwordx2 v[4:5], v7, s[48:51], 0 offen\ns_branch L_nn1")
    a.label("L_nn0"); a("s_waitcnt vmcnt(0)"); a.label("L_nn1")
    for t in range(14): a(f"ds_read_b64 v[{ACC+t*8+6}:{ACC+t*8+7}], v6 offset:{32*t}")
    a("s_lshl_b32 s16, s19, 8\ns_lshl_b32 s17, s14, 7\ns_add_u32 s16, s16, s17\ns_add_u32 s88, s88, s16\ns_addc_u32 s89, s89, 0")
    srd(a, 28, 88, 89, 128)
    a("s_lshl_b32 s17, s12, 18\ns_add_u32 s16, s16, s17\ns_add_u32 s90, s90, s16\ns_addc_u32 s91, s91, 0\ns_sub_u32 s17, 4194304, s16")
    srd(a, 32, 90, 91, "s17")
    a(f"s_mul_i32 s94, s13, 7\ns_mul_i32 s95, s14, 56\ns_mul_i32 s98, s12, 112*8192\ns_add_u32 s98, s98, {HOFF}\ns_lshl_b32 s99, s94, 13\ns_add_u32 s99, s99, s98")
    a(f"s_and_b32 s16, s2, 7\ns_lshl_b32 s16, s16, 2\ns_add_u32 s16, s16, s18\ns_lshl_b32 s16, s16, 2\ns_add_u32 s16, s16, s3\ns_lshl_b32 s16, s16, 7\ns_add_u32 s87, s16, {FLAG}\ns_lshl_b32 s16, s19, 3\ns_add_u32 s86, s87, s16")
    a("v_lshrrev_b32 v2, 2, v0\nv_and_b32 v2, 3, v2\nv_lshl_add_u32 v2, v3, 3, v2\nv_mul_u32_u24 v2, 448, v2\nv_and_b32 v8, 3, v0\nv_lshl_add_u32 v2, v8, 3, v2")
    a(f"v_and_b32 v8, 1, v3\nv_lshlrev_b32 v8, 5, v8\nv_add_u32 v{VT}, v2, v8\nv_xor_b32 v8, 32, v8\nv_add_u32 v{VT+1}, v2, v8\nv_add_u32 v{VT+2}, {WS[2]}, v{VT}\nv_add_u32 v{VT+3}, {WS[2]}, v{VT+1}")
    a(f"s_lshl_b32 s16, s3, 12\ns_add_u32 s16, s16, {XS[0]}\nv_and_b32 v2, 15, v0\nv_lshrrev_b32 v8, 1, v2\nv_xor_b32 v8, v8, v3\nv_lshlrev_b32 v2, 7, v2\nv_lshl_add_u32 v2, v8, 4, v2\nv_add_u32 v{VXR}, s16, v2\nv_xor_b32 v{VXR+1}, 64, v{VXR}")
    a("s_lshl_b32 s16, s3, 11\nv_lshlrev_b32 v1, 4, v0\nv_add_u32 v1, s16, v1\ns_waitcnt lgkmcnt(0)")
    for t in range(14):
        d = ACC + t*8
        a(f"v_lshlrev_b32 v{d}, 16, v{d+6}\nv_and_b32 v{d+1}, 0xffff0000, v{d+6}\nv_lshlrev_b32 v{d+2}, 16, v{d+7}\nv_and_b32 v{d+3}, 0xffff0000, v{d+7}\nv_pk_mov_b32 v[{d+4}:{d+5}], v[{d}:{d+1}], v[{d}:{d+1}] op_sel:[0,1]\nv_pk_mov_b32 v[{d+6}:{d+7}], v[{d+2}:{d+3}], v[{d+2}:{d+3}] op_sel:[0,1]")
    def rds(slot, j):
        r = [f"ds_read_b128 a[{XB[j]+mt*4}:{XB[j]+mt*4+3}], v{VXR+j} offset:{slot*16384+mt*2048}" for mt in range(2)]
        for t in range(14):
            for i in range(2):
                d = WB[j] + t*4 + i*2
                r.append(f"ds_read_b64_tr_b16 a[{d}:{d+1}], v{VT+(slot>>1)*2+(t&1)} offset:{(slot&1)*28672 + j*32*448 + i*4*448 + (t & ~1)*32}")
        return r
    pt(a, "w0"); a("s_barrier"); pt(a, "b0")
    for x in rds(0, 0): a(x)
    a("s_mov_b32 s39, 0")
    pt(a, "l1")
    def mf(j):
        return [f"v_mfma_f32_16x16x32_bf16 v[{ACC+(t*2+mt)*4}:{ACC+(t*2+mt)*4+3}], a[{WB[j]+t*4}:{WB[j]+t*4+3}], a[{XB[j]+mt*4}:{XB[j]+mt*4+3}], v[{ACC+(t*2+mt)*4}:{ACC+(t*2+mt)*4+3}]" for t in range(14) for mt in range(2)]
    RN, RD = O("rn", 2), O("rd", 3)
    def stage(s, last=False, extra=None):
        f = {-1: ["s_waitcnt lgkmcnt(0)"]}
        spread(f, rds(s, 1), 0, RN, RD)
        if last: f.setdefault(24, []).append("buffer_load_dwordx2 v[4:5], v7, s[56:59], 0 offen sc1\nv_lshlrev_b32 v2, 2, v0\nbuffer_load_dword v2, s[28:31], 0 offen lds")
        interleave(a, mf(0), f)
        f = {-1: ["s_waitcnt lgkmcnt(0)" + ("" if last else "\ns_barrier")]}
        if not last: spread(f, rds((s+1) % 3, 0), 0, RN, RD)
        if extra: f.setdefault(26, []).append(extra)
        interleave(a, mf(1), f)
    a.label("L1_loop")
    for s in range(3): stage(s, extra=("s_add_u32 s39, s39, 1\ns_cmp_lt_u32 s39, 5" if s == 2 else None))
    a("s_cbranch_scc1 L1_loop")
    stage(0, last=True)
    pt(a, "e1")
    WB2 = [0, 32]; VT2 = 88; B2 = 104; VH = 1
    HF = FL("hf", "sc1"); HS = FL("hs", "sc1")
    own = lambda u, mt: ACC + 16*u + 4*mt
    acc2 = lambda t, mt: (f"v[{ACC+16*t+8+4*mt}:{ACC+16*t+8+4*mt+3}]" if t < 4 else f"a[{96+(t-4)*8+4*mt}:{96+(t-4)*8+4*mt+3}]")
    hreg = lambda s, j, mt: (f"v[{own(2*s+j, mt)}:{own(2*s+j, mt)+3}]" if s < 2 else f"a[{64+(s-2)*16+(j*2+mt)*4}:{64+(s-2)*16+(j*2+mt)*4+3}]")
    def hl(s, j):
        km = kmap(95, 96, 94, 13, 98).split("\n")
        return [("", "\n".join(km[:3])), ("", "\n".join(km[3:]) + "\ns_add_u32 s95, s95, 1")] + [("", f"buffer_load_dwordx4 {hreg(s, j, mt)}, v{VH}, s[48:51], s96 offen offset:{mt*1024} {HF}") for mt in range(2)]
    def rds2(slot, j): return [f"ds_read_b64_tr_b16 a[{WB2[j]+t*4+i*2}:{WB2[j]+t*4+i*2+1}], v{VT2+t} offset:{slot*16384+j*8192+i*4096}" for t in range(8) for i in range(2)]
    for u in range(7):
        for mt in range(2):
            o = own(u, mt)
            for h in range(2):
                d = o + 8*h
                for e in range(4): a(f"v_max_f32 v{d+e}, 0, v{d+e}")
                a(f"v_pk_mul_f32 v[{d}:{d+1}], v[{d}:{d+1}], v[{d}:{d+1}]\nv_pk_mul_f32 v[{d+2}:{d+3}], v[{d+2}:{d+3}], v[{d+2}:{d+3}]")
                a(f"v_cvt_pk_bf16_f32 v{o+2*h}, v{d}, v{d+1}\nv_cvt_pk_bf16_f32 v{o+2*h+1}, v{d+2}, v{d+3}")
            a(f"buffer_store_dwordx4 v[{o}:{o+3}], v{VH}, s[48:51], s99 offen offset:{mt*1024} {HS}")
        a("s_add_u32 s99, s99, 8192")
        if u == 4:
            a(f"v_lshrrev_b32 v2, 2, v0\nv_and_b32 v8, 7, v2\ns_lshl_b32 s16, s14, 2\nv_xor_b32 v8, s16, v8\nv_lshlrev_b32 v2, 8, v2\nv_and_b32 v9, 3, v0\nv_lshl_add_u32 v2, v9, 3, v2\nv_add_u32 v2, {LB2}, v2")
            for t in range(8): a(f"v_xor_b32 v9, {t}, v8\nv_lshl_add_u32 v{VT2+t}, v9, 5, v2")
        if u == 5:
            a("s_waitcnt vmcnt(12)\ns_barrier")
            for t in range(4): a(f"ds_read_b64 v[{B2+2*t}:{B2+2*t+1}], v6 offset:{32*t}")
            for x in rds2(0, 0): a(x)
    a("v_and_b32 v11, 7, v0\nv_lshlrev_b32 v11, 3, v11\ns_waitcnt lgkmcnt(0)")
    for t in range(4):
        for mt in range(2):
            d = ACC+16*t+8+4*mt
            a(f"v_lshlrev_b32 v{d}, 16, v{B2+2*t}\nv_and_b32 v{d+1}, 0xffff0000, v{B2+2*t}\nv_lshlrev_b32 v{d+2}, 16, v{B2+2*t+1}\nv_and_b32 v{d+3}, 0xffff0000, v{B2+2*t+1}")
    a("v_readfirstlane_b32 s93, v5\ns_mov_b32 s39, 0\ns_cmp_lg_u32 s93, 0\ns_cbranch_scc1 L_nok")
    a.label("L_nsp")
    a("s_sleep 2\nbuffer_load_dwordx2 v[4:5], v7, s[56:59], 0 offen sc1\ns_add_u32 s39, s39, 1\ns_waitcnt vmcnt(0)\nv_readfirstlane_b32 s93, v5\ns_lshr_b32 s16, s39, 19\ns_or_b32 s16, s16, s93\ns_cmp_eq_u32 s16, 0\ns_cbranch_scc1 L_nsp")
    a.label("L_nok")
    pt(a, "g2")
    def mf2(s, j, ow, order, first):
        hr = lambda mt: (f"v[{own(ow, mt)}:{own(ow, mt)+3}]" if ow is not None else hreg(s, j, mt))
        return [f"v_mfma_f32_16x16x32_bf16 {acc2(t, mt)}, a[{WB2[j]+t*4}:{WB2[j]+t*4+3}], {hr(mt)}, {'0' if first and t >= 4 else acc2(t, mt)}" for t in order for mt in range(2)]
    def ph(s, j, pre, l, ow=None, last=False, extra=None, first=False):
        f = {-1: [pre]}
        if not last: spread(f, rds2(s, 1) if j == 0 else rds2((s+1) % 4, 0), 0, O("rn2", 2), O("rd2", 3))
        pos = [11, 12, 13, 15] if len(l) <= 4 else [2, 3, 4, 7, 11, 12, 13, 15]
        for p, (_, x) in zip(pos, l): f.setdefault(p, []).append(x)
        if extra: f.setdefault(14, []).append(extra)
        interleave(a, mf2(s, j, ow, [4,5,6,7,0,1,2,3] if last else range(8), first), f)
    L0 = "s_waitcnt lgkmcnt(0)"; LB = L0 + "\ns_barrier"
    poll = "buffer_load_dwordx2 v[8:9], v11, s[48:51], s87 offen sc1"
    ph(0, 0, L0, [], 0, first=True); ph(0, 1, LB, [], 1)
    ph(1, 0, "s_waitcnt vmcnt(0) lgkmcnt(0)\nbuffer_store_dwordx2 v[4:5], v7, s[48:51], s86 offen sc1", [], 2); ph(1, 1, LB, [], 3)
    pt(a, "p0")
    ph(2, 0, L0 + "\n" + poll, [], 4)
    a("s_mov_b32 s39, 0\ns_branch L_pc")
    a.label("L_pl")
    a("s_sleep 1\n" + poll + "\ns_add_u32 s39, s39, 1\ns_cmp_gt_u32 s39, 0x80000\ns_cbranch_scc1 L_pd")
    a.label("L_pc")
    a("s_waitcnt vmcnt(0)\nv_cmp_ne_u64 vcc, v[8:9], v[4:5]\ns_cbranch_vccnz L_pl")
    a.label("L_pd")
    pt(a, "pd")
    issue(a, hl(3, 1)+hl(0, 0)+hl(0, 1))
    ph(2, 1, LB, hl(1, 0)+hl(1, 1), 5)
    ph(3, 0, L0, hl(2, 0)+hl(2, 1), 6)
    ph(3, 1, "s_waitcnt vmcnt(12) lgkmcnt(0)\ns_barrier", hl(3, 0))
    a("s_mov_b32 s39, 0")
    pt(a, "l2")
    a.label("L2_loop")
    for s in range(4):
        ph(s, 0, "s_waitcnt vmcnt(12) lgkmcnt(0)", hl((s-1) % 4, 1))
        ph(s, 1, "s_waitcnt vmcnt(12) lgkmcnt(0)\ns_barrier", hl(s, 0), extra=("s_add_u32 s39, s39, 1\ns_cmp_lt_u32 s39, 5" if s == 3 else None))
    a("s_cbranch_scc1 L2_loop")
    for s in range(4):
        ph(s, 0, f"s_waitcnt vmcnt({12 if s == 0 else 14-4*s}) lgkmcnt(0)", hl(3, 1) if s == 0 else [])
        ph(s, 1, f"s_waitcnt vmcnt({12-4*s}) lgkmcnt(0)" + ("" if s == 3 else "\ns_barrier"), [], last=(s == 3))
    pt(a, "e2")
    a(f"s_lshl_b32 s16, s2, 2\ns_add_u32 s16, s16, s3\ns_xor_b32 s17, s16, 16\ns_lshl_b32 s18, s17, 13\ns_add_u32 s18, s18, {XCH}\ns_add_u32 s19, s18, 4096\nv_lshlrev_b32 v2, 4, v0")
    for q in range(8): a(f"buffer_store_dwordx4 a[{96+q*4}:{96+q*4+3}], v2, s[48:51], s{18+(q>>2)} offen offset:{(q&3)*1024} sc1")
    a(f"s_lshl_b32 s17, s17, 7\ns_add_u32 s17, s17, {XFL}")
    a(f"s_lshl_b32 s18, s16, 13\ns_add_u32 s18, s18, {XCH}\ns_add_u32 s19, s18, 4096\ns_lshl_b32 s16, s16, 7\ns_add_u32 s16, s16, {XFL}")
    a("v_and_b32 v10, 15, v0\nv_lshlrev_b32 v10, 11, v10\ns_lshl_b32 s15, s3, 16\nv_add_u32 v10, s15, v10\nv_and_b32 v11, 1, v3\nv_lshl_add_u32 v10, v11, 5, v10\nv_lshrrev_b32 v11, 1, v3\nv_lshl_add_u32 v10, v11, 4, v10\nv_add_u32 v11, 32768, v10")
    a("s_waitcnt vmcnt(0)\nbuffer_store_dwordx2 v[4:5], v7, s[48:51], s17 offen sc1\ns_mov_b32 s39, 0")
    pt(a, "xs")
    a.label("L_xl")
    a("s_sleep 1\nbuffer_load_dwordx2 v[8:9], v7, s[48:51], s16 offen sc1\ns_add_u32 s39, s39, 1\ns_cmp_gt_u32 s39, 0x80000\ns_cbranch_scc1 L_xd\ns_waitcnt vmcnt(0)\nv_cmp_ne_u64 vcc, v[8:9], v[4:5]\ns_cbranch_vccnz L_xl")
    a.label("L_xd")
    pt(a, "xd")
    for q in [0, 2, 4, 6, 1, 3, 5, 7]: a(f"buffer_load_dwordx4 v[{own(q>>1, q&1)}:{own(q>>1, q&1)+3}], v2, s[48:51], s{18+(q>>2)} offen offset:{(q&3)*1024} sc1")
    for qp in range(4):
        mt, tp = qp >> 1, qp & 1
        a(f"s_waitcnt vmcnt({6-qp})")
        o = 96 + qp*4
        for h in range(2):
            r = own(2*tp+h, mt); d = r + 8
            for e in (0, 2): a(f"v_pk_add_f32 v[{d+e}:{d+e+1}], v[{d+e}:{d+e+1}], v[{r+e}:{r+e+1}]")
            a(f"v_cvt_pk_bf16_f32 v{o+2*h}, v{d}, v{d+1}\nv_cvt_pk_bf16_f32 v{o+2*h+1}, v{d+2}, v{d+3}")
        a(f"s_nop 1\nv_permlane16_swap_b32 v{o}, v{o+2}\nv_permlane16_swap_b32 v{o+1}, v{o+3}")
        a(f"buffer_store_dwordx4 v[{o}:{o+3}], v{10+mt}, s[32:35], 0 offen offset:{tp*64} {FL('of')}")
    if STAMP: a("s_waitcnt vmcnt(0)")
    stamp(a, 6); stamp_rt(a, 7)
    stamp_out(a, 8, 0x8000000)
    a.label("L1_end")
    return a.text()

def kern(name, body, vgpr, accum):
    return f""".globl {name}
.p2align 8
.type {name},@function
{name}:
{body}
    s_endpgm
""", f""".amdhsa_kernel {name}
  .amdhsa_next_free_vgpr {vgpr}
  .amdhsa_next_free_sgpr 102
  .amdhsa_accum_offset {accum}
  .amdhsa_group_segment_fixed_size 0
  .amdhsa_kernarg_size 64
  .amdhsa_user_sgpr_count 2
  .amdhsa_user_sgpr_kernarg_segment_ptr 1
  .amdhsa_system_sgpr_workgroup_id_x 1
.end_amdhsa_kernel
"""
k1, d1 = kern(NAME + "_kernel", fused(), 256, 128)
hdr = "".join(l for l in open("cdna_kernels/" + NAME + ".s.ref").readlines()[:9])
out = hdr + f"""; @launch grid=(256,1,1) block=(512,1,1) lds={LDS1}
.amdgcn_target "amdgcn-amd-amdhsa--gfx950"
.text
{k1}.section .rodata,"a"
.p2align 6
{d1}"""
open(sys.argv[1], "w").write(out)
```

```python
import sys
NAME = "standalone__dense_activation_squared_relu__prompt"
opts = dict(a.split("=") for a in sys.argv[2:])
STAMP = int(opts.get("stamp", 0))
NOMFMA = int(opts.get("nomfma", 0))
NOTR = int(opts.get("notr", 0))
HST = opts.get("hst", "")
HST = HST.replace("+", " ")

class A:
    def __init__(s): s.l = []
    def __call__(s, t):
        for x in t.strip("\n").split("\n"): s.l.append("    " + x.strip())
    def label(s, n): s.l.append(n + ":")
    def text(s): return "\n".join(s.l)

def interleave(a, mfmas, fillers):
    for x in fillers.get(-1, []): a(x)
    for i, m in enumerate(mfmas):
        a(m if not NOMFMA else "s_nop 0")
        for x in fillers.get(i, []): a(x)

def srd(a, d, lo, hi, nrec):
    a(f"s_mov_b32 s{d}, s{lo}\ns_and_b32 s{d+1}, s{hi}, 0xffff\ns_mov_b32 s{d+2}, {nrec}\ns_mov_b32 s{d+3}, 0x20000")

def stamp(a, i):
    if STAMP: a(f"s_memtime s[{70+2*i}:{71+2*i}]")
def stamp_rt(a, i):
    if STAMP: a(f"s_memrealtime s[{70+2*i}:{71+2*i}]")
def stamp_out(a, n, wsoff, ws=None):
    if not STAMP: return
    a("s_load_dwordx2 s[60:61], s[0:1], 56\ns_waitcnt lgkmcnt(0)")
    a(f"s_add_u32 s60, s60, {wsoff}\ns_addc_u32 s61, s61, 0")
    srd(a, 64, 60, 61, 0x100000)
    a("s_lshl_b32 s62, s2, 2\ns_add_u32 s62, s62, s3\ns_lshl_b32 s62, s62, 6\nv_mov_b32 v0, s62")
    for i in range(n):
        a(f"v_mov_b32 v1, s{70+2*i}\nbuffer_store_dword v1, v0, s[64:67], 0 offen offset:{4*i}")
    a("s_waitcnt vmcnt(0)")


O = lambda k, d: int(opts.get(k, d))
FL = lambda k, d="": opts.get(k, d).replace("+", " ")
LDS1 = 141312
HOFF = 0x10000
XFL = 0x2080000
R2 = O("r2", 4); LDS2 = 16384*R2
FLAG = 0x2000000
XCH = 0x2100000
def spread(f, items, start, step_num, step_den):
    for n, x in enumerate(items): f.setdefault(start + n*step_num//step_den, []).append(x)
def adv(pos, cnt, base, WN):
    return [f"s_add_u32 s{pos}, s{pos}, 1\ns_cmp_eq_u32 s{pos}, {WN}", f"s_cselect_b32 s{pos}, 0, s{pos}\ns_add_u32 s{cnt}, s{cnt}, 1",
            f"s_cmp_eq_u32 s{cnt}, {WN}\ns_cselect_b32 s16, {WN}, 0", f"s_cselect_b32 s{cnt}, 0, s{cnt}\ns_add_u32 s{base}, s{base}, s16", f"s_add_u32 s16, s{base}, s{pos}"]
SEL = opts.get("sp", "l1,e1,pd,e2").split(",")
def pt(a, n):
    if n in SEL: stamp(a, 2 + SEL.index(n))
def advt(r, lim, inc, span):
    return [f"s_add_u32 s{r}, s{r}, {inc}\ns_cmp_ge_u32 s{r}, s{lim}", f"s_cselect_b32 s17, {span}, 0\ns_sub_u32 s{r}, s{r}, s17"]

WS = [0, 28672, 106496]; XS = [57344, 73728, 90112]; LB2 = 73728; LBI = 139264
def issue(a, l):
    for pre, x in l:
        if pre: a(pre + "\ns_nop 0")
        a(x)
def kmap(v, dst, own, sh, base=None):
    return f"s_cmp_ge_u32 s{v}, s{own}\ns_cselect_b32 s17, 7, 0\ns_add_u32 s17, s17, s{v}\ns_lshl_b32 s{dst}, s17, {sh}" + (f"\ns_add_u32 s{dst}, s{dst}, s{base}" if base else "")

def producer(a):
    VD = 16; VX = 24; VD2 = 28
    a("s_sub_u32 s3, s3, 4")
    a("v_lshrrev_b32 v2, 3, v0\nv_and_b32 v4, 7, v0\nv_xor_b32 v4, v4, v3\ns_lshl_b32 s16, s3, 16\nv_lshlrev_b32 v2, 11, v2\nv_add_u32 v2, s16, v2")
    a(f"v_lshl_add_u32 v{VX}, v4, 4, v2\nv_xor_b32 v4, 4, v4\nv_lshl_add_u32 v{VX+1}, v4, 4, v2\nv_add_u32 v{VX+2}, {2*15360}, v{VX}\nv_add_u32 v{VX+3}, {3*15360}, v{VX+1}\nv_add_u32 v{VX+1}, 15360, v{VX+1}")
    a("s_mul_i32 s36, s3, 7168\ns_lshl_b32 s43, s3, 12\ns_mov_b32 s15, 9363\ns_mul_i32 s40, s3, 16*7168\ns_lshl_b32 s16, s12, 18\ns_mul_i32 s41, s13, 448")
    WN = O("wn1", 1)
    a(f"s_mul_i32 s60, s18, {O('sm1', 0)}\ns_mul_i32 s61, s19, {O('sf1', 0)}\ns_add_u32 s60, s60, s61\ns_and_b32 s60, s60, {WN-1}\ns_mov_b32 s61, 0\ns_mov_b32 s62, 0\ns_mul_i32 s37, s60, 458752\ns_lshl_b32 s38, s60, 7")
    a("s_waitcnt lgkmcnt(0)")
    a("s_add_u32 s20, s4, s16\ns_addc_u32 s21, s5, 0\ns_and_b32 s21, s21, 0xffff\ns_mov_b32 s22, 262144\ns_mov_b32 s23, 0x20000")
    def lds(slot):
        r = [(f"s_add_u32 m0, s43, {XS[slot]}" if i == 0 else "", f"buffer_load_dwordx4 v{VX+i}, s[20:23], s38 offen offset:{i*1024} lds") for i in range(4)]
        return r + [(f"s_add_u32 m0, s36, {WS[slot]+(i&4)*1024}" if i in (0, 4) else "", f"buffer_load_dwordx4 v{VD+i}, s[24:27], s37 offen offset:{(i&3)*1024} lds") for i in range(7)]
    issue(a, lds(0)[:4])
    a("s_add_u32 s24, s6, s41\ns_addc_u32 s25, s7, 0\ns_and_b32 s25, s25, 0xffff\ns_sub_u32 s26, 7340032, s41\ns_mov_b32 s27, 0x20000")
    for i in range(7):
        a(f"v_add_u32 v2, {64*i}, v0\nv_mul_u32_u24 v7, s15, v2\nv_lshrrev_b32 v7, 18, v7\nv_mul_u32_u24 v4, 28, v7\nv_sub_u32 v4, v2, v4")
        a(f"v_lshrrev_b32 v5, 2, v7\nv_and_b32 v5, 2, v5\nv_xor_b32 v4, v4, v5\nv_mul_u32_u24 v7, 7168, v7\nv_lshl_add_u32 v7, v4, 4, v7")
        a(f"v_add_u32 v7, s40, v7\nv_subrev_u32 v{VD+i}, {(i&3)*1024}, v7")
        issue(a, lds(0)[4+i:5+i])
        if i == O("pfat", 2):
            a("s_lshl_b32 s42, s2, 2\ns_add_u32 s42, s42, s3\ns_lshl_b32 s16, s42, 12\ns_add_u32 s28, s4, s16\ns_addc_u32 s29, s5, 0")
            a(f"s_mul_i32 s16, s42, 896\ns_add_u32 s16, s16, {PF0//2*917504}\ns_add_u32 s30, s6, s16\ns_addc_u32 s31, s7, 0")
            for x in pf(O("q0", 11)): a(x)
    nx = "s_add_u32 s37, s37, 458752\ns_add_u32 s38, s38, 128"
    if WN > 1: nx = "\n".join(adv(60, 61, 62, WN)) + "\ns_mul_i32 s37, s16, 458752\ns_lshl_b32 s38, s16, 7"
    srd(a, 48, 4, 5, 4194304); srd(a, 56, 6, 7, 7340032)
    VTS = dict((int(z.split(":")[0]), tuple(map(int, z.split(":")[1:]))) for z in opts.get("vt", "").split(",") if z)
    def vt(k):
        if k not in VTS: return 0
        s0, s1 = VTS[k]; n1 = s1 - s0; nl = (n1*3584 + 1023)//1024
        a(f"v_min_u32 v2, {2*n1-1}, v0\nv_and_b32 v4, 1, v2\nv_lshrrev_b32 v2, 1, v2\nv_lshlrev_b32 v2, 7, v2\nv_lshl_add_u32 v2, v4, 11, v2\ns_lshl_b32 s16, s42, 12\nbuffer_load_dword v8, v2, s[48:51], s16 offen offset:{128*s0}")
        a(f"v_min_u32 v2, {nl-1}, v0\nv_lshlrev_b32 v2, 7, v2\ns_mul_i32 s16, s42, {n1*448}\ns_and_b32 s16, s16, 0xffffff80\ns_add_u32 s16, s16, {458752*s0}\nbuffer_load_dword v9, v2, s[56:59], s16 offen")
        return 2
    NT = vt(0)
    a(nx); issue(a, lds(1)); a(nx)
    n1_ = vt(1); NT += n1_
    srd(a, 52, 10, 11, 7340032)
    a("v_and_b32 v4, 15, v0\nv_lshlrev_b32 v5, 1, v3\nv_xor_b32 v4, v4, v5\ns_and_b32 s16, s3, 1\ns_lshl_b32 s16, s16, 15\ns_lshl_b32 s17, s19, 8\ns_add_u32 s16, s16, s17\nv_lshlrev_b32 v2, 11, v3\nv_add_u32 v2, s16, v2")
    a(f"v_lshl_add_u32 v{VD2}, v4, 4, v2\nv_xor_b32 v4, 8, v4\nv_lshl_add_u32 v{VD2+1}, v4, 4, v2\nv_add_u32 v{VD2+2}, {2*7168}, v{VD2}\nv_add_u32 v{VD2+3}, {3*7168}, v{VD2+1}\nv_add_u32 v{VD2+1}, 7168, v{VD2+1}")
    a(f"s_waitcnt vmcnt({11+NT})\ns_barrier")
    a("s_lshl_b32 s16, s12, 2\ns_add_u32 s16, s16, s3\ns_lshr_b32 s17, s16, 1\ns_lshl_b32 s17, s17, 11\ns_and_b32 s16, s16, 1\ns_lshl_b32 s16, s16, 7\ns_add_u32 s16, s16, s17\ns_lshl_b32 s17, s19, 8\ns_add_u32 s16, s16, s17\ns_add_u32 s32, s10, s16\ns_addc_u32 s33, s11, 0")
    a(f"s_mul_i32 s94, s13, 7\ns_mul_i32 s95, s14, 56\ns_lshr_b32 s97, s3, 1\ns_add_u32 s96, s95, s97\ns_sub_u32 s96, s96, 1\ns_add_u32 s43, s43, 0\ns_lshl_b32 s86, s3, 12\ns_add_u32 s86, s86, {LB2}")
    def mix(l, q):
        p = pf(q); k = 0
        for n, it in enumerate(l):
            issue(a, [it])
            while k < len(p) and k < (n+1)*len(p)//len(l): a(p[k]); k += 1
    def w2(st):
        if st < 3: pre = f"s_add_u32 s17, s94, s97\ns_add_u32 s17, s17, {2*st}\ns_lshl_b32 s98, s17, 16"
        elif st == 3: pre = kmap(96, 98, 94, 16) + f"\ns_add_u32 s17, s94, 6\ns_lshl_b32 s17, s17, 16\ns_cmp_eq_u32 s97, 0\ns_cselect_b32 s98, s17, s98\ns_add_u32 s96, s96, 2"
        else: pre = kmap(96, 98, 94, 16) + "\ns_add_u32 s96, s96, 2"
        return [(pre + f"\ns_add_u32 m0, s86, {(st%4)*16384}" if i == 0 else "", f"buffer_load_dwordx4 v{VD2+i}, s[52:55], s98 offen offset:{i*1024} lds") for i in range(4)]
    QS = O("qs", 5)
    mix(lds(2), O("q1", 6)); a(nx)
    a("s_mul_i32 s16, s42, 7168\nv_min_u32 v10, 55, v0\nv_lshlrev_b32 v10, 7, v10\nv_add_u32 v10, s16, v10")
    TW = O("tw", 15); prev = n1_; cur = vt(2)
    for s in range(15):
        a(f"s_waitcnt vmcnt({(11 if s < 14 else 4) + prev + cur})\ns_barrier")
        prev = cur; cur = 0
        if s < 13:
            mix(lds(s % 3), QS); a(nx); cur = vt(s+3)
            if s+3 == TW: a("buffer_load_dword v11, v10, s[52:55], 0 offen"); cur += 1
        elif s == 13: mix(w2(0), QS)
        else: mix(w2(1)+w2(2)+w2(3), O("q2", 20))
    a("s_waitcnt vmcnt(12)\ns_barrier")
    for s in range(27):
        a(f"s_waitcnt vmcnt({4*min(2, 26-s)})\ns_barrier")
        if s < 24: mix(w2(s+4), O("q3", 3))
    assert not PFL, len(PFL)
    a("s_waitcnt lgkmcnt(0)\ns_endpgm")
PF0 = O("pf0", 16)
PFL = []
for p in range(PF0//2, 8):
    PFL += [f"s_load_dword s34, s[28:29], {r*2048 + 2*p*128 + e*64}" for e in range(4) for r in range(2)]
    PFL += [f"s_load_dword s34, s[30:31], {i*64}" for i in range(13)] + ["s_load_dword s34, s[30:31], 832\ns_add_u32 s30, s30, 917504\ns_addc_u32 s31, s31, 0"]
L2_ = "s_add_u32 s35, s35, 64\ns_load_dword s34, s[32:33], s35"
for q in range(O("pw2", 0)):
    PFL += [f"s_add_u32 s17, s94, {q}\ns_lshl_b32 s35, s17, 16\ns_load_dword s34, s[32:33], s35" if q < 7 else kmap(95, 35, 94, 16) + "\ns_load_dword s34, s[32:33], s35\ns_add_u32 s95, s95, 1", L2_]
def pf(n):
    r = PFL[:n]; del PFL[:n]; return r

def fused():
    a = A()
    ACC = 16; WB = [0, 56]; XB = [112, 120]; VT = 10; VXR = 14
    stamp_rt(a, 0); stamp(a, 1)
    a("s_cmp_ge_u32 s2, 256\ns_cbranch_scc1 L1_end")
    a("s_load_dwordx4 s[4:7], s[0:1], 0\ns_load_dwordx4 s[8:11], s[0:1], 16\ns_load_dwordx4 s[88:91], s[0:1], 32\ns_load_dwordx4 s[44:47], s[0:1], 48")
    a("v_lshrrev_b32 v1, 6, v0\nv_and_b32 v0, 63, v0\ns_lshr_b32 s13, s2, 3\nv_readfirstlane_b32 s3, v1\nv_lshrrev_b32 v3, 4, v0")
    a("s_and_b32 s18, s13, 3\ns_lshr_b32 s19, s13, 2")
    a("s_and_b32 s12, s2, 3\ns_lshl_b32 s12, s12, 2\ns_add_u32 s12, s12, s18")
    a("s_and_b32 s13, s2, 4\ns_lshr_b32 s14, s13, 2\ns_lshl_b32 s13, s13, 1\ns_add_u32 s13, s13, s19")
    a("s_cmp_lt_u32 s3, 4\ns_cbranch_scc1 L_main")
    producer(a)
    a.label("L_main")
    if O("cp", 0):
        CPN = O("cp", 0)
        a(f"s_cmp_lg_u32 s3, 0\ns_cbranch_scc1 L_ncp\ns_getpc_b64 s[20:21]")
        a.label("L_gpc")
        a(f"s_lshr_b32 s16, s2, 3\ns_and_b32 s16, s16, {CPN-1}\ns_mul_i32 s16, s16, {176//CPN}\nv_min_u32 v4, {176//CPN-1}, v0\nv_add_u32 v4, s16, v4\nv_lshlrev_b32 v4, 7, v4\nv_min_u32 v4, L1_end-{NAME}_kernel, v4")
        a(f"s_sub_u32 s20, s20, L_gpc-{NAME}_kernel\ns_subb_u32 s21, s21, 0\nv_mov_b32 v5, s21\nv_add_co_u32 v4, vcc, s20, v4\nv_addc_co_u32 v5, vcc, 0, v5, vcc\nglobal_load_dword v8, v[4:5], off")
        a.label("L_ncp")
    a(f"s_lshl_b32 s16, s3, 9\ns_add_u32 m0, s16, {LBI}\nv_lshlrev_b32 v2, 2, v0\nv_lshlrev_b32 v6, 3, v3\nv_add_u32 v6, m0, v6\ns_mul_i32 s16, s13, 448")
    a("s_waitcnt lgkmcnt(0)\ns_add_u32 s8, s8, s16\ns_addc_u32 s9, s9, 0")
    srd(a, 28, 8, 9, 448)
    a("buffer_load_dword v2, s[28:31], 0 offen lds\nbuffer_load_dword v2, s[28:31], 0 offen offset:256 lds")
    srd(a, 48, 46, 47, 0x4000000); srd(a, 56, 44, 45, 256)
    a("v_mov_b32 v7, 0\ns_or_b32 s16, s2, s3\ns_cmp_eq_u32 s16, 0\ns_cbranch_scc0 L_nn0\ns_load_dwordx2 s[92:93], s[46:47], 0\ns_waitcnt lgkmcnt(0)\ns_add_u32 s92, s92, 1\ns_or_b32 s93, s93, 1\nv_mov_b32 v4, s92\nv_mov_b32 v5, s93")
    a("s_waitcnt vmcnt(0)\nbuffer_store_dwordx2 v[4:5], v7, s[56:59], 0 offen sc1\nbuffer_store_dwordx2 v[4:5], v7, s[48:51], 0 offen\ns_branch L_nn1")
    a.label("L_nn0"); a("s_waitcnt vmcnt(0)"); a.label("L_nn1")
    for t in range(14): a(f"ds_read_b64 v[{ACC+t*8+6}:{ACC+t*8+7}], v6 offset:{32*t}")
    a("s_lshl_b32 s16, s19, 8\ns_lshl_b32 s17, s14, 7\ns_add_u32 s16, s16, s17\ns_add_u32 s88, s88, s16\ns_addc_u32 s89, s89, 0")
    srd(a, 28, 88, 89, 128)
    a("s_lshl_b32 s17, s12, 18\ns_add_u32 s16, s16, s17\ns_add_u32 s90, s90, s16\ns_addc_u32 s91, s91, 0\ns_sub_u32 s17, 4194304, s16")
    srd(a, 32, 90, 91, "s17")
    a(f"s_mul_i32 s94, s13, 7\ns_mul_i32 s95, s14, 56\ns_mul_i32 s98, s12, 112*8192\ns_add_u32 s98, s98, {HOFF}\ns_lshl_b32 s99, s94, 13\ns_add_u32 s99, s99, s98")
    a(f"s_and_b32 s16, s2, 7\ns_lshl_b32 s16, s16, 2\ns_add_u32 s16, s16, s18\ns_lshl_b32 s16, s16, 2\ns_add_u32 s16, s16, s3\ns_lshl_b32 s16, s16, 7\ns_add_u32 s87, s16, {FLAG}\ns_lshl_b32 s16, s19, 3\ns_add_u32 s86, s87, s16")
    a("v_lshrrev_b32 v2, 2, v0\nv_and_b32 v2, 3, v2\nv_lshl_add_u32 v2, v3, 3, v2\nv_mul_u32_u24 v2, 448, v2\nv_and_b32 v8, 3, v0\nv_lshl_add_u32 v2, v8, 3, v2")
    a(f"v_and_b32 v8, 1, v3\nv_lshlrev_b32 v8, 5, v8\nv_add_u32 v{VT}, v2, v8\nv_xor_b32 v8, 32, v8\nv_add_u32 v{VT+1}, v2, v8\nv_add_u32 v{VT+2}, {WS[2]}, v{VT}\nv_add_u32 v{VT+3}, {WS[2]}, v{VT+1}")
    a(f"s_lshl_b32 s16, s3, 12\ns_add_u32 s16, s16, {XS[0]}\nv_and_b32 v2, 15, v0\nv_lshrrev_b32 v8, 1, v2\nv_xor_b32 v8, v8, v3\nv_lshlrev_b32 v2, 7, v2\nv_lshl_add_u32 v2, v8, 4, v2\nv_add_u32 v{VXR}, s16, v2\nv_xor_b32 v{VXR+1}, 64, v{VXR}")
    a("s_lshl_b32 s16, s3, 11\nv_lshlrev_b32 v1, 4, v0\nv_add_u32 v1, s16, v1\ns_waitcnt lgkmcnt(0)")
    for t in range(14):
        d = ACC + t*8
        a(f"v_lshlrev_b32 v{d}, 16, v{d+6}\nv_and_b32 v{d+1}, 0xffff0000, v{d+6}\nv_lshlrev_b32 v{d+2}, 16, v{d+7}\nv_and_b32 v{d+3}, 0xffff0000, v{d+7}\nv_pk_mov_b32 v[{d+4}:{d+5}], v[{d}:{d+1}], v[{d}:{d+1}] op_sel:[0,1]\nv_pk_mov_b32 v[{d+6}:{d+7}], v[{d+2}:{d+3}], v[{d+2}:{d+3}] op_sel:[0,1]")
    def rds(slot, j):
        r = [f"ds_read_b128 a[{XB[j]+mt*4}:{XB[j]+mt*4+3}], v{VXR+j} offset:{slot*16384+mt*2048}" for mt in range(2)]
        for t in range(14):
            for i in range(2):
                d = WB[j] + t*4 + i*2
                r.append(f"ds_read_b64_tr_b16 a[{d}:{d+1}], v{VT+(slot>>1)*2+(t&1)} offset:{(slot&1)*28672 + j*32*448 + i*4*448 + (t & ~1)*32}")
        return r
    pt(a, "w0"); a("s_barrier"); pt(a, "b0")
    for x in rds(0, 0): a(x)
    a("s_mov_b32 s39, 0")
    pt(a, "l1")
    def mf(j):
        return [f"v_mfma_f32_16x16x32_bf16 v[{ACC+(t*2+mt)*4}:{ACC+(t*2+mt)*4+3}], a[{WB[j]+t*4}:{WB[j]+t*4+3}], a[{XB[j]+mt*4}:{XB[j]+mt*4+3}], v[{ACC+(t*2+mt)*4}:{ACC+(t*2+mt)*4+3}]" for t in range(14) for mt in range(2)]
    RN, RD = O("rn", 2), O("rd", 3)
    def stage(s, last=False, extra=None):
        f = {-1: ["s_waitcnt lgkmcnt(0)"]}
        spread(f, rds(s, 1), 0, RN, RD)
        if last: f.setdefault(24, []).append("buffer_load_dwordx2 v[4:5], v7, s[56:59], 0 offen sc1\nv_lshlrev_b32 v2, 2, v0\nbuffer_load_dword v2, s[28:31], 0 offen lds")
        interleave(a, mf(0), f)
        f = {-1: ["s_waitcnt lgkmcnt(0)" + ("" if last else "\ns_barrier")]}
        if not last: spread(f, rds((s+1) % 3, 0), 0, RN, RD)
        if extra: f.setdefault(26, []).append(extra)
        interleave(a, mf(1), f)
    a.label("L1_loop")
    for s in range(3): stage(s, extra=("s_add_u32 s39, s39, 1\ns_cmp_lt_u32 s39, 5" if s == 2 else None))
    a("s_cbranch_scc1 L1_loop")
    stage(0, last=True)
    pt(a, "e1")
    WB2 = [0, 32]; VT2 = 88; B2 = 104; VH = 1
    HF = FL("hf", "sc1"); HS = FL("hs", "sc1")
    own = lambda u, mt: ACC + 16*u + 4*mt
    acc2 = lambda t, mt: (f"v[{ACC+16*t+8+4*mt}:{ACC+16*t+8+4*mt+3}]" if t < 4 else f"a[{96+(t-4)*8+4*mt}:{96+(t-4)*8+4*mt+3}]")
    hreg = lambda s, j, mt: (f"v[{own(2*s+j, mt)}:{own(2*s+j, mt)+3}]" if s < 2 else f"a[{64+(s-2)*16+(j*2+mt)*4}:{64+(s-2)*16+(j*2+mt)*4+3}]")
    def hl(s, j):
        km = kmap(95, 96, 94, 13, 98).split("\n")
        return [("", "\n".join(km[:3])), ("", "\n".join(km[3:]) + "\ns_add_u32 s95, s95, 1")] + [("", f"buffer_load_dwordx4 {hreg(s, j, mt)}, v{VH}, s[48:51], s96 offen offset:{mt*1024} {HF}") for mt in range(2)]
    def rds2(slot, j): return [f"ds_read_b64_tr_b16 a[{WB2[j]+t*4+i*2}:{WB2[j]+t*4+i*2+1}], v{VT2+t} offset:{slot*16384+j*8192+i*4096}" for t in range(8) for i in range(2)]
    for u in range(7):
        for mt in range(2):
            o = own(u, mt)
            for h in range(2):
                d = o + 8*h
                for e in range(4): a(f"v_max_f32 v{d+e}, 0, v{d+e}")
                a(f"v_pk_mul_f32 v[{d}:{d+1}], v[{d}:{d+1}], v[{d}:{d+1}]\nv_pk_mul_f32 v[{d+2}:{d+3}], v[{d+2}:{d+3}], v[{d+2}:{d+3}]")
                a(f"v_cvt_pk_bf16_f32 v{o+2*h}, v{d}, v{d+1}\nv_cvt_pk_bf16_f32 v{o+2*h+1}, v{d+2}, v{d+3}")
            a(f"buffer_store_dwordx4 v[{o}:{o+3}], v{VH}, s[48:51], s99 offen offset:{mt*1024} {HS}")
        a("s_add_u32 s99, s99, 8192")
        if u == 4:
            a(f"v_lshrrev_b32 v2, 2, v0\nv_and_b32 v8, 7, v2\ns_lshl_b32 s16, s14, 2\nv_xor_b32 v8, s16, v8\nv_lshlrev_b32 v2, 8, v2\nv_and_b32 v9, 3, v0\nv_lshl_add_u32 v2, v9, 3, v2\nv_add_u32 v2, {LB2}, v2")
            for t in range(8): a(f"v_xor_b32 v9, {t}, v8\nv_lshl_add_u32 v{VT2+t}, v9, 5, v2")
        if u == 5:
            a("s_waitcnt vmcnt(12)\ns_barrier")
            for t in range(4): a(f"ds_read_b64 v[{B2+2*t}:{B2+2*t+1}], v6 offset:{32*t}")
            for x in rds2(0, 0): a(x)
    a("v_and_b32 v11, 7, v0\nv_lshlrev_b32 v11, 3, v11\ns_waitcnt lgkmcnt(0)")
    for t in range(4):
        for mt in range(2):
            d = ACC+16*t+8+4*mt
            a(f"v_lshlrev_b32 v{d}, 16, v{B2+2*t}\nv_and_b32 v{d+1}, 0xffff0000, v{B2+2*t}\nv_lshlrev_b32 v{d+2}, 16, v{B2+2*t+1}\nv_and_b32 v{d+3}, 0xffff0000, v{B2+2*t+1}")
    a("v_readfirstlane_b32 s93, v5\ns_mov_b32 s39, 0\ns_cmp_lg_u32 s93, 0\ns_cbranch_scc1 L_nok")
    a.label("L_nsp")
    a("s_sleep 2\nbuffer_load_dwordx2 v[4:5], v7, s[56:59], 0 offen sc1\ns_add_u32 s39, s39, 1\ns_waitcnt vmcnt(0)\nv_readfirstlane_b32 s93, v5\ns_lshr_b32 s16, s39, 19\ns_or_b32 s16, s16, s93\ns_cmp_eq_u32 s16, 0\ns_cbranch_scc1 L_nsp")
    a.label("L_nok")
    pt(a, "g2")
    def mf2(s, j, ow, order, first):
        hr = lambda mt: (f"v[{own(ow, mt)}:{own(ow, mt)+3}]" if ow is not None else hreg(s, j, mt))
        return [f"v_mfma_f32_16x16x32_bf16 {acc2(t, mt)}, a[{WB2[j]+t*4}:{WB2[j]+t*4+3}], {hr(mt)}, {'0' if first and t >= 4 else acc2(t, mt)}" for t in order for mt in range(2)]
    def ph(s, j, pre, l, ow=None, last=False, extra=None, first=False):
        f = {-1: [pre]}
        if not last: spread(f, rds2(s, 1) if j == 0 else rds2((s+1) % 4, 0), 0, O("rn2", 2), O("rd2", 3))
        pos = [11, 12, 13, 15] if len(l) <= 4 else [2, 3, 4, 7, 11, 12, 13, 15]
        for p, (_, x) in zip(pos, l): f.setdefault(p, []).append(x)
        if extra: f.setdefault(14, []).append(extra)
        interleave(a, mf2(s, j, ow, [4,5,6,7,0,1,2,3] if last else range(8), first), f)
    L0 = "s_waitcnt lgkmcnt(0)"; LB = L0 + "\ns_barrier"
    poll = "buffer_load_dwordx2 v[8:9], v11, s[48:51], s87 offen sc1"
    ph(0, 0, L0, [], 0, first=True); ph(0, 1, LB, [], 1)
    ph(1, 0, "s_waitcnt vmcnt(0) lgkmcnt(0)\nbuffer_store_dwordx2 v[4:5], v7, s[48:51], s86 offen sc1", [], 2); ph(1, 1, LB, [], 3)
    pt(a, "p0")
    ph(2, 0, L0 + "\n" + poll, [], 4)
    a(f"v_readfirstlane_b32 s20, v4\ns_lshl_b32 s16, s2, 2\ns_add_u32 s16, s16, s3\ns_lshl_b32 s16, s16, 13\ns_add_u32 s26, s16, {XCH}\ns_add_u32 s27, s26, 4096\ns_xor_b32 s24, s26, {16<<13}\ns_add_u32 s25, s24, 4096\nv_lshlrev_b32 v2, 4, v0\ns_lshr_b32 s16, s16, 6\ns_add_u32 s19, s16, {XFL}\ns_xor_b32 s18, s19, {16<<7}")
    a("s_mul_i32 s20, s20, 0x01010101\ns_lshr_b32 s23, s20, 24\ns_bfe_u32 s22, s20, 0x80010\ns_bfe_u32 s21, s20, 0x80008\ns_and_b32 s20, s20, 0xff\nv_mov_b32 v14, 0xffffff00")
    a("v_and_b32 v12, 15, v0\nv_lshlrev_b32 v12, 11, v12\ns_lshl_b32 s15, s3, 16\nv_add_u32 v12, s15, v12\nv_and_b32 v13, 1, v3\nv_lshl_add_u32 v12, v13, 5, v12\nv_lshrrev_b32 v13, 1, v3\nv_lshl_add_u32 v12, v13, 4, v12\nv_add_u32 v13, 32768, v12")
    a("s_mov_b32 s39, 0\ns_branch L_pc")
    a.label("L_pl")
    a("s_sleep 1\n" + poll + "\ns_add_u32 s39, s39, 1\ns_cmp_gt_u32 s39, 0x80000\ns_cbranch_scc1 L_pd")
    a.label("L_pc")
    a("s_waitcnt vmcnt(0)\nv_cmp_ne_u64 vcc, v[8:9], v[4:5]\ns_cbranch_vccnz L_pl")
    a.label("L_pd")
    pt(a, "pd")
    issue(a, hl(3, 1)+hl(0, 0)+hl(0, 1))
    ph(2, 1, LB, hl(1, 0)+hl(1, 1), 5)
    ph(3, 0, L0, hl(2, 0)+hl(2, 1), 6)
    ph(3, 1, "s_waitcnt vmcnt(12) lgkmcnt(0)\ns_barrier", hl(3, 0))
    a("s_mov_b32 s39, 0")
    pt(a, "l2")
    a.label("L2_loop")
    for s in range(4):
        ph(s, 0, "s_waitcnt vmcnt(12) lgkmcnt(0)", hl((s-1) % 4, 1))
        ph(s, 1, "s_waitcnt vmcnt(12) lgkmcnt(0)\ns_barrier", hl(s, 0), extra=("s_add_u32 s39, s39, 1\ns_cmp_lt_u32 s39, 5" if s == 3 else None))
    a("s_cbranch_scc1 L2_loop")
    XT = O("xt", 2); KX = 56 - 2*XT; R = 96
    P = [[(k, t) for t in range(8)] for k in range(48, KX)]
    P += [[(k+e, t) for e in range(2) for t in range(4, 8)] for k in range(KX, 56, 2)]
    NY = len(P)
    P += [[(k+e, t) for e in range(2) for t in range(4)] for k in range(KX, 56, 2)]
    snd = []
    for q in range(8):
        snd += ["\n".join(f"v_accvgpr_read_b32 v{R+4*q+e}, a{96+4*q+e}" for e in range(4)),
                "\n".join(f"v_and_or_b32 v{R+4*q+e}, v{R+4*q+e}, v14, s{20+e}" for e in range(4)) + f"\nbuffer_store_dwordx4 v[{R+4*q}:{R+4*q+3}], v2, s[48:51], s{24+(q>>2)} offen offset:{(q&3)*1024} sc1"]
    QO = [0, 2, 4, 6, 1, 3, 5, 7]
    rcv = [f"buffer_load_dwordx4 v[{R+4*q}:{R+4*q+3}], v2, s[48:51], s{26+(q>>2)} offen offset:{(q&3)*1024} sc1" for q in QO]
    yf = {}; spread(yf, snd, 1, O("sn", 1), O("sd", 1)); RP = O("rp", 16)
    assert max(yf) < 16*XT - RP or RP == 0
    FM = O("fm", 1); xflag = f"s_waitcnt vmcnt({O('fw', 0)})\nbuffer_store_dwordx2 v[4:5], v7, s[48:51], s18 offen sc1"
    if FM: yf.setdefault(16*XT - 1 - RP, []).append(xflag)
    for n, x in enumerate([] if FM else rcv): yf.setdefault(min(16*XT - 1, 16*XT - RP + n*O("rs", 1)), []).append(x)
    bar = 0
    for n, p in enumerate(P):
        km = max(k for k, t in p); pre = (f"s_waitcnt vmcnt({min(12, 2*(55-km))}) lgkmcnt(0)" if n < NY else L0)
        f = {}
        if n < 7:
            sn = (max(k for k, t in P[n+1]) >> 1) % 4
            if sn > bar: assert sn == bar + 1; bar = sn; pre += "\ns_barrier"
            spread(f, [f"ds_read_b64_tr_b16 a[{WB2[1-(n&1)]+m*4+i*2}:{WB2[1-(n&1)]+m*4+i*2+1}], v{VT2+t} offset:{(k-48)*8192+i*4096}" for m, (k, t) in enumerate(P[n+1]) for i in range(2)], 0, O("rn2", 2), O("rd2", 3))
        f[-1] = [pre]
        if n == 0:
            for pp, (_, x) in zip([1, 2, 3, 5], hl(3, 1)): f.setdefault(pp, []).append(x)
        if n == NY: pt(a, "xs")
        if n >= NY:
            for i in range(16): f.setdefault(i, []).extend(yf.get(16*(n-NY)+i, []))
        interleave(a, [f"v_mfma_f32_16x16x32_bf16 {acc2(t, mt)}, a[{WB2[n&1]+m*4}:{WB2[n&1]+m*4+3}], {hreg((k>>1)%4, k&1, mt)}, {acc2(t, mt)}" for m, (k, t) in enumerate(p) for mt in range(2)], f)
    assert bar == 3
    pt(a, "e2")
    a("s_mov_b32 s39, 0" + ("" if FM else "\ns_branch L_xc"))
    a.label("L_xl")
    if FM: a(f"s_sleep {O('xsl', 1)}\nbuffer_load_dwordx2 v[8:9], v7, s[48:51], s19 offen sc1\ns_add_u32 s39, s39, 1\ns_cmp_gt_u32 s39, 0x80000\ns_cbranch_scc1 L_xd\ns_waitcnt vmcnt(0)\nv_cmp_ne_u64 vcc, v[8:9], v[4:5]\ns_cbranch_vccnz L_xl"); pt(a, "xp")
    else: a(f"s_sleep {O('xsl', 1)}\nbuffer_load_dword v8, v7, s[48:51], s27 offen offset:4092 sc1\ns_add_u32 s39, s39, 1\ns_cmp_gt_u32 s39, 0x80000\ns_cbranch_scc1 L_xd\ns_waitcnt vmcnt(0)\nv_and_b32 v8, 0xff, v8\nv_cmp_ne_u32 vcc, s23, v8\ns_cbranch_vccnz L_xl")
    for x in rcv: a(x)
    a.label("L_xc")
    for n, q in enumerate(QO):
        r = R + 4*q
        a(f"s_waitcnt vmcnt({7-n})\n" + "\n".join(f"v_xor_b32 v{r+e}, s{20+e}, v{r+e}" for e in range(4)))
        a((f"v_or_b32 v15, v{r}, v{r+1}" if n == 0 else f"v_or3_b32 v15, v15, v{r}, v{r+1}") + f"\nv_or3_b32 v15, v15, v{r+2}, v{r+3}")
    a("v_and_b32 v15, 0xff, v15\nv_cmp_ne_u32 vcc, 0, v15\ns_cbranch_vccnz L_xl")
    a.label("L_xd")
    pt(a, "xd")
    for qp in range(4):
        mt, tp = qp >> 1, qp & 1
        o = own(qp, 0)
        for h in range(2):
            r = R + 4*((2*tp+h)*2+mt); d = own(2*tp+h, mt) + 8
            for e in (0, 2): a(f"v_pk_add_f32 v[{d+e}:{d+e+1}], v[{d+e}:{d+e+1}], v[{r+e}:{r+e+1}]")
            a(f"v_cvt_pk_bf16_f32 v{o+2*h}, v{d}, v{d+1}\nv_cvt_pk_bf16_f32 v{o+2*h+1}, v{d+2}, v{d+3}")
        a(f"s_nop 1\nv_permlane16_swap_b32 v{o}, v{o+2}\nv_permlane16_swap_b32 v{o+1}, v{o+3}")
        a(f"buffer_store_dwordx4 v[{o}:{o+3}], v{12+mt}, s[32:35], 0 offen offset:{tp*64} {FL('of')}")
    if STAMP: a("s_waitcnt vmcnt(0)")
    stamp(a, 6); stamp_rt(a, 7)
    stamp_out(a, 8, 0x8000000)
    a.label("L1_end")
    return a.text()

def kern(name, body, vgpr, accum):
    return f""".globl {name}
.p2align 8
.type {name},@function
{name}:
{body}
    s_endpgm
""", f""".amdhsa_kernel {name}
  .amdhsa_next_free_vgpr {vgpr}
  .amdhsa_next_free_sgpr 102
  .amdhsa_accum_offset {accum}
  .amdhsa_group_segment_fixed_size 0
  .amdhsa_kernarg_size 64
  .amdhsa_user_sgpr_count 2
  .amdhsa_user_sgpr_kernarg_segment_ptr 1
  .amdhsa_system_sgpr_workgroup_id_x 1
.end_amdhsa_kernel
"""
k1, d1 = kern(NAME + "_kernel", fused(), 256, 128)
hdr = "".join(l for l in open("cdna_kernels/" + NAME + ".s.ref").readlines()[:9])
out = hdr + f"""; @launch grid=(256,1,1) block=(512,1,1) lds={LDS1}
.amdgcn_target "amdgcn-amd-amdhsa--gfx950"
.text
{k1}.section .rodata,"a"
.p2align 6
{d1}"""
open(sys.argv[1], "w").write(out)
```

```python
import sys
NAME = "standalone__dense_activation_squared_relu__prompt"
opts = dict(a.split("=") for a in sys.argv[2:])
STAMP = int(opts.get("stamp", 0))
NOMFMA = int(opts.get("nomfma", 0))
NOTR = int(opts.get("notr", 0))
HST = opts.get("hst", "")
HST = HST.replace("+", " ")

class A:
    def __init__(s): s.l = []
    def __call__(s, t):
        for x in t.strip("\n").split("\n"): s.l.append("    " + x.strip())
    def label(s, n): s.l.append(n + ":")
    def text(s): return "\n".join(s.l)

def interleave(a, mfmas, fillers):
    for x in fillers.get(-1, []): a(x)
    for i, m in enumerate(mfmas):
        a(m if not NOMFMA else "s_nop 0")
        for x in fillers.get(i, []): a(x)

def srd(a, d, lo, hi, nrec):
    a(f"s_mov_b32 s{d}, s{lo}\ns_and_b32 s{d+1}, s{hi}, 0xffff\ns_mov_b32 s{d+2}, {nrec}\ns_mov_b32 s{d+3}, 0x20000")

def stamp(a, i):
    if STAMP: a(f"s_memtime s[{70+2*i}:{71+2*i}]")
def stamp_rt(a, i):
    if STAMP: a(f"s_memrealtime s[{70+2*i}:{71+2*i}]")
def stamp_out(a, n, wsoff, ws=None):
    if not STAMP: return
    a("s_load_dwordx2 s[60:61], s[0:1], 56\ns_waitcnt lgkmcnt(0)")
    a(f"s_add_u32 s60, s60, {wsoff}\ns_addc_u32 s61, s61, 0")
    srd(a, 64, 60, 61, 0x100000)
    a("s_lshl_b32 s62, s2, 2\ns_add_u32 s62, s62, s3\ns_lshl_b32 s62, s62, 6\nv_mov_b32 v0, s62")
    for i in range(n):
        a(f"v_mov_b32 v1, s{70+2*i}\nbuffer_store_dword v1, v0, s[64:67], 0 offen offset:{4*i}")
    a("s_waitcnt vmcnt(0)")


O = lambda k, d: int(opts.get(k, d))
FL = lambda k, d="": opts.get(k, d).replace("+", " ")
LDS1 = 141312
HOFF = 0x10000
XFL = 0x2080000
R2 = O("r2", 4); LDS2 = 16384*R2
FLAG = 0x2000000
XCH = 0x2100000
def spread(f, items, start, step_num, step_den):
    for n, x in enumerate(items): f.setdefault(start + n*step_num//step_den, []).append(x)
def adv(pos, cnt, base, WN):
    return [f"s_add_u32 s{pos}, s{pos}, 1\ns_cmp_eq_u32 s{pos}, {WN}", f"s_cselect_b32 s{pos}, 0, s{pos}\ns_add_u32 s{cnt}, s{cnt}, 1",
            f"s_cmp_eq_u32 s{cnt}, {WN}\ns_cselect_b32 s16, {WN}, 0", f"s_cselect_b32 s{cnt}, 0, s{cnt}\ns_add_u32 s{base}, s{base}, s16", f"s_add_u32 s16, s{base}, s{pos}"]
SEL = opts.get("sp", "l1,e1,pd,e2").split(",")
def pt(a, n):
    if n in SEL: stamp(a, 2 + SEL.index(n))
def advt(r, lim, inc, span):
    return [f"s_add_u32 s{r}, s{r}, {inc}\ns_cmp_ge_u32 s{r}, s{lim}", f"s_cselect_b32 s17, {span}, 0\ns_sub_u32 s{r}, s{r}, s17"]

WS = [0, 28672, 106496]; XS = [57344, 73728, 90112]; LB2 = 73728; LBI = 139264
def issue(a, l):
    for pre, x in l:
        if pre: a(pre + "\ns_nop 0")
        a(x)
def kmap(v, dst, own, sh, base=None):
    return f"s_cmp_ge_u32 s{v}, s{own}\ns_cselect_b32 s17, 7, 0\ns_add_u32 s17, s17, s{v}\ns_lshl_b32 s{dst}, s17, {sh}" + (f"\ns_add_u32 s{dst}, s{dst}, s{base}" if base else "")

def producer(a):
    VD = 16; VX = 24; VD2 = 28
    a("s_sub_u32 s3, s3, 4")
    a("v_lshrrev_b32 v2, 3, v0\nv_and_b32 v4, 7, v0\nv_xor_b32 v4, v4, v3\ns_lshl_b32 s16, s3, 16\nv_lshlrev_b32 v2, 11, v2\nv_add_u32 v2, s16, v2")
    a(f"v_lshl_add_u32 v{VX}, v4, 4, v2\nv_xor_b32 v4, 4, v4\nv_lshl_add_u32 v{VX+1}, v4, 4, v2\nv_add_u32 v{VX+2}, {2*15360}, v{VX}\nv_add_u32 v{VX+3}, {3*15360}, v{VX+1}\nv_add_u32 v{VX+1}, 15360, v{VX+1}")
    a("s_mul_i32 s36, s3, 7168\ns_lshl_b32 s43, s3, 12\ns_mov_b32 s15, 9363\ns_mul_i32 s40, s3, 16*7168\ns_lshl_b32 s16, s12, 18\ns_mul_i32 s41, s13, 448")
    WN = O("wn1", 1)
    a(f"s_mul_i32 s60, s18, {O('sm1', 0)}\ns_mul_i32 s61, s19, {O('sf1', 0)}\ns_add_u32 s60, s60, s61\ns_and_b32 s60, s60, {WN-1}\ns_mov_b32 s61, 0\ns_mov_b32 s62, 0\ns_mul_i32 s37, s60, 458752\ns_lshl_b32 s38, s60, 7")
    a("s_waitcnt lgkmcnt(0)")
    a("s_add_u32 s20, s4, s16\ns_addc_u32 s21, s5, 0\ns_and_b32 s21, s21, 0xffff\ns_mov_b32 s22, 262144\ns_mov_b32 s23, 0x20000")
    def lds(slot):
        r = [(f"s_add_u32 m0, s43, {XS[slot]}" if i == 0 else "", f"buffer_load_dwordx4 v{VX+i}, s[20:23], s38 offen offset:{i*1024} lds") for i in range(4)]
        return r + [(f"s_add_u32 m0, s36, {WS[slot]+(i&4)*1024}" if i in (0, 4) else "", f"buffer_load_dwordx4 v{VD+i}, s[24:27], s37 offen offset:{(i&3)*1024} lds") for i in range(7)]
    issue(a, lds(0)[:4])
    a("s_add_u32 s24, s6, s41\ns_addc_u32 s25, s7, 0\ns_and_b32 s25, s25, 0xffff\ns_sub_u32 s26, 7340032, s41\ns_mov_b32 s27, 0x20000")
    for i in range(7):
        a(f"v_add_u32 v2, {64*i}, v0\nv_mul_u32_u24 v7, s15, v2\nv_lshrrev_b32 v7, 18, v7\nv_mul_u32_u24 v4, 28, v7\nv_sub_u32 v4, v2, v4")
        a(f"v_lshrrev_b32 v5, 2, v7\nv_and_b32 v5, 2, v5\nv_xor_b32 v4, v4, v5\nv_mul_u32_u24 v7, 7168, v7\nv_lshl_add_u32 v7, v4, 4, v7")
        a(f"v_add_u32 v7, s40, v7\nv_subrev_u32 v{VD+i}, {(i&3)*1024}, v7")
        issue(a, lds(0)[4+i:5+i])
        if i == O("pfat", 2):
            a("s_lshl_b32 s42, s2, 2\ns_add_u32 s42, s42, s3\ns_lshl_b32 s16, s42, 12\ns_add_u32 s28, s4, s16\ns_addc_u32 s29, s5, 0")
            a(f"s_mul_i32 s16, s42, 896\ns_add_u32 s16, s16, {PF0//2*917504}\ns_add_u32 s30, s6, s16\ns_addc_u32 s31, s7, 0")
            for x in pf(O("q0", 11)): a(x)
    nx = "s_add_u32 s37, s37, 458752\ns_add_u32 s38, s38, 128"
    if WN > 1: nx = "\n".join(adv(60, 61, 62, WN)) + "\ns_mul_i32 s37, s16, 458752\ns_lshl_b32 s38, s16, 7"
    srd(a, 48, 4, 5, 4194304); srd(a, 56, 6, 7, 7340032)
    VTS = dict((int(z.split(":")[0]), tuple(map(int, z.split(":")[1:]))) for z in opts.get("vt", "").split(",") if z)
    def vt(k):
        if k not in VTS: return 0
        s0, s1 = VTS[k]; n1 = s1 - s0; nl = (n1*3584 + 1023)//1024
        a(f"v_min_u32 v2, {2*n1-1}, v0\nv_and_b32 v4, 1, v2\nv_lshrrev_b32 v2, 1, v2\nv_lshlrev_b32 v2, 7, v2\nv_lshl_add_u32 v2, v4, 11, v2\ns_lshl_b32 s16, s42, 12\nbuffer_load_dword v8, v2, s[48:51], s16 offen offset:{128*s0}")
        a(f"v_min_u32 v2, {nl-1}, v0\nv_lshlrev_b32 v2, 7, v2\ns_mul_i32 s16, s42, {n1*448}\ns_and_b32 s16, s16, 0xffffff80\ns_add_u32 s16, s16, {458752*s0}\nbuffer_load_dword v9, v2, s[56:59], s16 offen")
        return 2
    NT = vt(0)
    a(nx); issue(a, lds(1)); a(nx)
    n1_ = vt(1); NT += n1_
    srd(a, 52, 10, 11, 7340032)
    a("v_and_b32 v4, 15, v0\nv_lshlrev_b32 v5, 1, v3\nv_xor_b32 v4, v4, v5\ns_and_b32 s16, s3, 1\ns_lshl_b32 s16, s16, 15\ns_lshl_b32 s17, s19, 8\ns_add_u32 s16, s16, s17\nv_lshlrev_b32 v2, 11, v3\nv_add_u32 v2, s16, v2")
    a(f"v_lshl_add_u32 v{VD2}, v4, 4, v2\nv_xor_b32 v4, 8, v4\nv_lshl_add_u32 v{VD2+1}, v4, 4, v2\nv_add_u32 v{VD2+2}, {2*7168}, v{VD2}\nv_add_u32 v{VD2+3}, {3*7168}, v{VD2+1}\nv_add_u32 v{VD2+1}, 7168, v{VD2+1}")
    a(f"s_waitcnt vmcnt({11+NT})\ns_barrier")
    a("s_lshl_b32 s16, s12, 2\ns_add_u32 s16, s16, s3\ns_lshr_b32 s17, s16, 1\ns_lshl_b32 s17, s17, 11\ns_and_b32 s16, s16, 1\ns_lshl_b32 s16, s16, 7\ns_add_u32 s16, s16, s17\ns_lshl_b32 s17, s19, 8\ns_add_u32 s16, s16, s17\ns_add_u32 s32, s10, s16\ns_addc_u32 s33, s11, 0")
    a(f"s_mul_i32 s94, s13, 7\ns_mul_i32 s95, s14, 56\ns_lshr_b32 s97, s3, 1\ns_add_u32 s96, s95, s97\ns_sub_u32 s96, s96, 1\ns_add_u32 s43, s43, 0\ns_lshl_b32 s86, s3, 12\ns_add_u32 s86, s86, {LB2}")
    def mix(l, q):
        p = pf(q); k = 0
        for n, it in enumerate(l):
            issue(a, [it])
            while k < len(p) and k < (n+1)*len(p)//len(l): a(p[k]); k += 1
    def w2(st):
        if st < 3: pre = f"s_add_u32 s17, s94, s97\ns_add_u32 s17, s17, {2*st}\ns_lshl_b32 s98, s17, 16"
        elif st == 3: pre = kmap(96, 98, 94, 16) + f"\ns_add_u32 s17, s94, 6\ns_lshl_b32 s17, s17, 16\ns_cmp_eq_u32 s97, 0\ns_cselect_b32 s98, s17, s98\ns_add_u32 s96, s96, 2"
        else: pre = kmap(96, 98, 94, 16) + "\ns_add_u32 s96, s96, 2"
        return [(pre + f"\ns_add_u32 m0, s86, {(st%4)*16384}" if i == 0 else "", f"buffer_load_dwordx4 v{VD2+i}, s[52:55], s98 offen offset:{i*1024} lds") for i in range(4)]
    QS = O("qs", 5)
    mix(lds(2), O("q1", 6)); a(nx)
    a("s_mul_i32 s16, s42, 7168\nv_min_u32 v10, 55, v0\nv_lshlrev_b32 v10, 7, v10\nv_add_u32 v10, s16, v10")
    TW = O("tw", 15); prev = n1_; cur = vt(2)
    for s in range(15):
        a(f"s_waitcnt vmcnt({(11 if s < 14 else 4) + prev + cur})\ns_barrier")
        prev = cur; cur = 0
        if s < 13:
            mix(lds(s % 3), QS); a(nx); cur = vt(s+3)
            if s+3 == TW: a("buffer_load_dword v11, v10, s[52:55], 0 offen"); cur += 1
        elif s == 13: mix(w2(0), QS)
        else: mix(w2(1)+w2(2)+w2(3), O("q2", 20))
    a("s_waitcnt vmcnt(12)\ns_barrier")
    for s in range(27):
        a(f"s_waitcnt vmcnt({4*min(2, 26-s)})\ns_barrier")
        if s < 24: mix(w2(s+4), O("q3", 3))
    assert not PFL, len(PFL)
    a("s_waitcnt lgkmcnt(0)\ns_endpgm")
PF0 = O("pf0", 16)
PFL = []
for p in range(PF0//2, 8):
    PFL += [f"s_load_dword s34, s[28:29], {r*2048 + 2*p*128 + e*64}" for e in range(4) for r in range(2)]
    PFL += [f"s_load_dword s34, s[30:31], {i*64}" for i in range(13)] + ["s_load_dword s34, s[30:31], 832\ns_add_u32 s30, s30, 917504\ns_addc_u32 s31, s31, 0"]
L2_ = "s_add_u32 s35, s35, 64\ns_load_dword s34, s[32:33], s35"
for q in range(O("pw2", 0)):
    PFL += [f"s_add_u32 s17, s94, {q}\ns_lshl_b32 s35, s17, 16\ns_load_dword s34, s[32:33], s35" if q < 7 else kmap(95, 35, 94, 16) + "\ns_load_dword s34, s[32:33], s35\ns_add_u32 s95, s95, 1", L2_]
def pf(n):
    r = PFL[:n]; del PFL[:n]; return r

def fused():
    a = A()
    ACC = 16; WB = [0, 56]; XB = [112, 120]; VT = 10; VXR = 14
    stamp_rt(a, 0); stamp(a, 1)
    a("s_cmp_ge_u32 s2, 256\ns_cbranch_scc1 L1_end")
    a("s_load_dwordx4 s[4:7], s[0:1], 0\ns_load_dwordx4 s[8:11], s[0:1], 16\ns_load_dwordx4 s[88:91], s[0:1], 32\ns_load_dwordx4 s[44:47], s[0:1], 48")
    a("v_lshrrev_b32 v1, 6, v0\nv_and_b32 v0, 63, v0\ns_lshr_b32 s13, s2, 3\nv_readfirstlane_b32 s3, v1\nv_lshrrev_b32 v3, 4, v0")
    a("s_and_b32 s18, s13, 3\ns_lshr_b32 s19, s13, 2")
    a("s_and_b32 s12, s2, 3\ns_lshl_b32 s12, s12, 2\ns_add_u32 s12, s12, s18")
    a("s_and_b32 s13, s2, 4\ns_lshr_b32 s14, s13, 2\ns_lshl_b32 s13, s13, 1\ns_add_u32 s13, s13, s19")
    a("s_cmp_lt_u32 s3, 4\ns_cbranch_scc1 L_main")
    producer(a)
    a.label("L_main")
    if O("cp", 0):
        CPN = O("cp", 0)
        a(f"s_cmp_lg_u32 s3, 0\ns_cbranch_scc1 L_ncp\ns_getpc_b64 s[20:21]")
        a.label("L_gpc")
        a(f"s_lshr_b32 s16, s2, 3\ns_and_b32 s16, s16, {CPN-1}\ns_mul_i32 s16, s16, {176//CPN}\nv_min_u32 v4, {176//CPN-1}, v0\nv_add_u32 v4, s16, v4\nv_lshlrev_b32 v4, 7, v4\nv_min_u32 v4, L1_end-{NAME}_kernel, v4")
        a(f"s_sub_u32 s20, s20, L_gpc-{NAME}_kernel\ns_subb_u32 s21, s21, 0\nv_mov_b32 v5, s21\nv_add_co_u32 v4, vcc, s20, v4\nv_addc_co_u32 v5, vcc, 0, v5, vcc\nglobal_load_dword v8, v[4:5], off")
        a.label("L_ncp")
    a(f"s_lshl_b32 s16, s3, 9\ns_add_u32 m0, s16, {LBI}\nv_lshlrev_b32 v2, 2, v0\nv_lshlrev_b32 v6, 3, v3\nv_add_u32 v6, m0, v6\ns_mul_i32 s16, s13, 448")
    a("s_waitcnt lgkmcnt(0)\ns_add_u32 s8, s8, s16\ns_addc_u32 s9, s9, 0")
    srd(a, 28, 8, 9, 448)
    a("buffer_load_dword v2, s[28:31], 0 offen lds\nbuffer_load_dword v2, s[28:31], 0 offen offset:256 lds")
    srd(a, 48, 46, 47, 0x4000000); srd(a, 56, 44, 45, 256)
    a("v_mov_b32 v7, 0\ns_or_b32 s16, s2, s3\ns_cmp_eq_u32 s16, 0\ns_cbranch_scc0 L_nn0\ns_load_dwordx2 s[92:93], s[46:47], 0\ns_waitcnt lgkmcnt(0)\ns_add_u32 s92, s92, 1\ns_or_b32 s93, s93, 1\nv_mov_b32 v4, s92\nv_mov_b32 v5, s93")
    a("s_waitcnt vmcnt(0)\nbuffer_store_dwordx2 v[4:5], v7, s[56:59], 0 offen sc1\nbuffer_store_dwordx2 v[4:5], v7, s[48:51], 0 offen\ns_branch L_nn1")
    a.label("L_nn0"); a("s_waitcnt vmcnt(0)"); a.label("L_nn1")
    for t in range(14): a(f"ds_read_b64 v[{ACC+t*8+6}:{ACC+t*8+7}], v6 offset:{32*t}")
    a("s_lshl_b32 s16, s19, 8\ns_lshl_b32 s17, s14, 7\ns_add_u32 s16, s16, s17\ns_add_u32 s88, s88, s16\ns_addc_u32 s89, s89, 0")
    srd(a, 28, 88, 89, 128)
    a("s_lshl_b32 s17, s12, 18\ns_add_u32 s16, s16, s17\ns_add_u32 s90, s90, s16\ns_addc_u32 s91, s91, 0\ns_sub_u32 s17, 4194304, s16")
    srd(a, 32, 90, 91, "s17")
    a(f"s_mul_i32 s94, s13, 7\ns_mul_i32 s95, s14, 56\ns_mul_i32 s98, s12, 112*8192\ns_add_u32 s98, s98, {HOFF}\ns_lshl_b32 s99, s94, 13\ns_add_u32 s99, s99, s98")
    a(f"s_and_b32 s16, s2, 7\ns_lshl_b32 s16, s16, 2\ns_add_u32 s16, s16, s18\ns_lshl_b32 s16, s16, 2\ns_add_u32 s16, s16, s3\ns_lshl_b32 s16, s16, 7\ns_add_u32 s87, s16, {FLAG}\ns_lshl_b32 s16, s19, 3\ns_add_u32 s86, s87, s16")
    a("v_lshrrev_b32 v2, 2, v0\nv_and_b32 v2, 3, v2\nv_lshl_add_u32 v2, v3, 3, v2\nv_mul_u32_u24 v2, 448, v2\nv_and_b32 v8, 3, v0\nv_lshl_add_u32 v2, v8, 3, v2")
    a(f"v_and_b32 v8, 1, v3\nv_lshlrev_b32 v8, 5, v8\nv_add_u32 v{VT}, v2, v8\nv_xor_b32 v8, 32, v8\nv_add_u32 v{VT+1}, v2, v8\nv_add_u32 v{VT+2}, {WS[2]}, v{VT}\nv_add_u32 v{VT+3}, {WS[2]}, v{VT+1}")
    a(f"s_lshl_b32 s16, s3, 12\ns_add_u32 s16, s16, {XS[0]}\nv_and_b32 v2, 15, v0\nv_lshrrev_b32 v8, 1, v2\nv_xor_b32 v8, v8, v3\nv_lshlrev_b32 v2, 7, v2\nv_lshl_add_u32 v2, v8, 4, v2\nv_add_u32 v{VXR}, s16, v2\nv_xor_b32 v{VXR+1}, 64, v{VXR}")
    a("s_lshl_b32 s16, s3, 11\nv_lshlrev_b32 v1, 4, v0\nv_add_u32 v1, s16, v1\ns_waitcnt lgkmcnt(0)")
    TP = O("tp", 0)
    if TP:
        a("s_cmp_lg_u32 s3, 1\ns_cbranch_scc1 L_ntp")
        if TP & 1: a("buffer_load_dword v9, v7, s[48:51], s99 offen")
        if TP & 2: a(f"s_xor_b32 s16, s2, 4\ns_lshl_b32 s16, s16, 15\ns_add_u32 s16, s16, {XCH}\nbuffer_load_dword v9, v7, s[48:51], s16 offen")
        if TP & 4: a("s_mov_b32 s16, 0x20c0000\nbuffer_load_dword v9, v7, s[48:51], s16 offen")
        if TP & 8: a("buffer_load_dword v9, v7, s[32:35], 0 offen")
        if TP & 16:
            srd(a, 52, 10, 11, 7340032)
            a("s_mul_i32 s16, s14, 3670016\nv_and_b32 v2, 7, v0\nv_lshlrev_b32 v2, 19, v2\nbuffer_load_dword v9, v2, s[52:55], s16 offen")
        a.label("L_ntp")
    for t in range(14):
        d = ACC + t*8
        a(f"v_lshlrev_b32 v{d}, 16, v{d+6}\nv_and_b32 v{d+1}, 0xffff0000, v{d+6}\nv_lshlrev_b32 v{d+2}, 16, v{d+7}\nv_and_b32 v{d+3}, 0xffff0000, v{d+7}\nv_pk_mov_b32 v[{d+4}:{d+5}], v[{d}:{d+1}], v[{d}:{d+1}] op_sel:[0,1]\nv_pk_mov_b32 v[{d+6}:{d+7}], v[{d+2}:{d+3}], v[{d+2}:{d+3}] op_sel:[0,1]")
    def rds(slot, j):
        r = [f"ds_read_b128 a[{XB[j]+mt*4}:{XB[j]+mt*4+3}], v{VXR+j} offset:{slot*16384+mt*2048}" for mt in range(2)]
        for t in range(14):
            for i in range(2):
                d = WB[j] + t*4 + i*2
                r.append(f"ds_read_b64_tr_b16 a[{d}:{d+1}], v{VT+(slot>>1)*2+(t&1)} offset:{(slot&1)*28672 + j*32*448 + i*4*448 + (t & ~1)*32}")
        return r
    pt(a, "w0"); a("s_barrier"); pt(a, "b0")
    for x in rds(0, 0): a(x)
    a("s_mov_b32 s39, 0")
    pt(a, "l1")
    def mf(j):
        return [f"v_mfma_f32_16x16x32_bf16 v[{ACC+(t*2+mt)*4}:{ACC+(t*2+mt)*4+3}], a[{WB[j]+t*4}:{WB[j]+t*4+3}], a[{XB[j]+mt*4}:{XB[j]+mt*4+3}], v[{ACC+(t*2+mt)*4}:{ACC+(t*2+mt)*4+3}]" for t in range(14) for mt in range(2)]
    RN, RD = O("rn", 2), O("rd", 3)
    def stage(s, last=False, extra=None):
        f = {-1: ["s_waitcnt lgkmcnt(0)"]}
        spread(f, rds(s, 1), 0, RN, RD)
        if last: f.setdefault(24, []).append("buffer_load_dwordx2 v[4:5], v7, s[56:59], 0 offen sc1\nv_lshlrev_b32 v2, 2, v0\nbuffer_load_dword v2, s[28:31], 0 offen lds")
        interleave(a, mf(0), f)
        f = {-1: ["s_waitcnt lgkmcnt(0)" + ("" if last else "\ns_barrier")]}
        if not last: spread(f, rds((s+1) % 3, 0), 0, RN, RD)
        if extra: f.setdefault(26, []).append(extra)
        interleave(a, mf(1), f)
    a.label("L1_loop")
    for s in range(3): stage(s, extra=("s_add_u32 s39, s39, 1\ns_cmp_lt_u32 s39, 5" if s == 2 else None))
    a("s_cbranch_scc1 L1_loop")
    stage(0, last=True)
    pt(a, "e1")
    WB2 = [0, 32]; VT2 = 88; B2 = 104; VH = 1
    HF = FL("hf", "sc1"); HS = FL("hs", "sc1")
    own = lambda u, mt: ACC + 16*u + 4*mt
    acc2 = lambda t, mt: (f"v[{ACC+16*t+8+4*mt}:{ACC+16*t+8+4*mt+3}]" if t < 4 else f"a[{96+(t-4)*8+4*mt}:{96+(t-4)*8+4*mt+3}]")
    hreg = lambda s, j, mt: (f"v[{own(2*s+j, mt)}:{own(2*s+j, mt)+3}]" if s < 2 else f"a[{64+(s-2)*16+(j*2+mt)*4}:{64+(s-2)*16+(j*2+mt)*4+3}]")
    def hl(s, j):
        km = kmap(95, 96, 94, 13, 98).split("\n")
        return [("", "\n".join(km[:3])), ("", "\n".join(km[3:]) + "\ns_add_u32 s95, s95, 1")] + [("", f"buffer_load_dwordx4 {hreg(s, j, mt)}, v{VH}, s[48:51], s96 offen offset:{mt*1024} {HF}") for mt in range(2)]
    def rds2(slot, j): return [f"ds_read_b64_tr_b16 a[{WB2[j]+t*4+i*2}:{WB2[j]+t*4+i*2+1}], v{VT2+t} offset:{slot*16384+j*8192+i*4096}" for t in range(8) for i in range(2)]
    for u in range(7):
        for mt in range(2):
            o = own(u, mt)
            for h in range(2):
                d = o + 8*h
                for e in range(4): a(f"v_max_f32 v{d+e}, 0, v{d+e}")
                a(f"v_pk_mul_f32 v[{d}:{d+1}], v[{d}:{d+1}], v[{d}:{d+1}]\nv_pk_mul_f32 v[{d+2}:{d+3}], v[{d+2}:{d+3}], v[{d+2}:{d+3}]")
                a(f"v_cvt_pk_bf16_f32 v{o+2*h}, v{d}, v{d+1}\nv_cvt_pk_bf16_f32 v{o+2*h+1}, v{d+2}, v{d+3}")
            a(f"buffer_store_dwordx4 v[{o}:{o+3}], v{VH}, s[48:51], s99 offen offset:{mt*1024} {HS}")
        a("s_add_u32 s99, s99, 8192")
        if u == 4:
            a(f"v_lshrrev_b32 v2, 2, v0\nv_and_b32 v8, 7, v2\ns_lshl_b32 s16, s14, 2\nv_xor_b32 v8, s16, v8\nv_lshlrev_b32 v2, 8, v2\nv_and_b32 v9, 3, v0\nv_lshl_add_u32 v2, v9, 3, v2\nv_add_u32 v2, {LB2}, v2")
            for t in range(8): a(f"v_xor_b32 v9, {t}, v8\nv_lshl_add_u32 v{VT2+t}, v9, 5, v2")
        if u == 5:
            a("s_waitcnt vmcnt(12)\ns_barrier")
            for t in range(4): a(f"ds_read_b64 v[{B2+2*t}:{B2+2*t+1}], v6 offset:{32*t}")
            for x in rds2(0, 0): a(x)
    a("v_and_b32 v11, 7, v0\nv_lshlrev_b32 v11, 3, v11\ns_waitcnt lgkmcnt(0)")
    for t in range(4):
        for mt in range(2):
            d = ACC+16*t+8+4*mt
            a(f"v_lshlrev_b32 v{d}, 16, v{B2+2*t}\nv_and_b32 v{d+1}, 0xffff0000, v{B2+2*t}\nv_lshlrev_b32 v{d+2}, 16, v{B2+2*t+1}\nv_and_b32 v{d+3}, 0xffff0000, v{B2+2*t+1}")
    a("v_readfirstlane_b32 s93, v5\ns_mov_b32 s39, 0\ns_cmp_lg_u32 s93, 0\ns_cbranch_scc1 L_nok")
    a.label("L_nsp")
    a("s_sleep 2\nbuffer_load_dwordx2 v[4:5], v7, s[56:59], 0 offen sc1\ns_add_u32 s39, s39, 1\ns_waitcnt vmcnt(0)\nv_readfirstlane_b32 s93, v5\ns_lshr_b32 s16, s39, 19\ns_or_b32 s16, s16, s93\ns_cmp_eq_u32 s16, 0\ns_cbranch_scc1 L_nsp")
    a.label("L_nok")
    pt(a, "g2")
    def mf2(s, j, ow, order, first):
        hr = lambda mt: (f"v[{own(ow, mt)}:{own(ow, mt)+3}]" if ow is not None else hreg(s, j, mt))
        return [f"v_mfma_f32_16x16x32_bf16 {acc2(t, mt)}, a[{WB2[j]+t*4}:{WB2[j]+t*4+3}], {hr(mt)}, {'0' if first and t >= 4 else acc2(t, mt)}" for t in order for mt in range(2)]
    def ph(s, j, pre, l, ow=None, last=False, extra=None, first=False):
        f = {-1: [pre]}
        if not last: spread(f, rds2(s, 1) if j == 0 else rds2((s+1) % 4, 0), 0, O("rn2", 2), O("rd2", 3))
        pos = [11, 12, 13, 15] if len(l) <= 4 else [2, 3, 4, 7, 11, 12, 13, 15]
        for p, (_, x) in zip(pos, l): f.setdefault(p, []).append(x)
        if extra: f.setdefault(14, []).append(extra)
        interleave(a, mf2(s, j, ow, [4,5,6,7,0,1,2,3] if last else range(8), first), f)
    L0 = "s_waitcnt lgkmcnt(0)"; LB = L0 + "\ns_barrier"
    poll = "buffer_load_dwordx2 v[8:9], v11, s[48:51], s87 offen sc1"
    ph(0, 0, L0, [], 0, first=True); ph(0, 1, LB, [], 1)
    ph(1, 0, "s_waitcnt vmcnt(0) lgkmcnt(0)\nbuffer_store_dwordx2 v[4:5], v7, s[48:51], s86 offen sc1", [], 2); ph(1, 1, LB, [], 3)
    pt(a, "p0")
    ph(2, 0, L0 + "\n" + poll, [], 4)
    a(f"v_readfirstlane_b32 s20, v4\ns_lshl_b32 s16, s2, 2\ns_add_u32 s16, s16, s3\ns_lshl_b32 s16, s16, 13\ns_add_u32 s26, s16, {XCH}\ns_add_u32 s27, s26, 4096\ns_xor_b32 s24, s26, {16<<13}\ns_add_u32 s25, s24, 4096\nv_lshlrev_b32 v2, 4, v0\ns_lshr_b32 s16, s16, 6\ns_add_u32 s19, s16, {XFL}\ns_xor_b32 s18, s19, {16<<7}")
    a("s_mul_i32 s20, s20, 0x01010101\ns_lshr_b32 s23, s20, 24\ns_bfe_u32 s22, s20, 0x80010\ns_bfe_u32 s21, s20, 0x80008\ns_and_b32 s20, s20, 0xff\nv_mov_b32 v14, 0xffffff00")
    a("v_and_b32 v12, 15, v0\nv_lshlrev_b32 v12, 11, v12\ns_lshl_b32 s15, s3, 16\nv_add_u32 v12, s15, v12\nv_and_b32 v13, 1, v3\nv_lshl_add_u32 v12, v13, 5, v12\nv_lshrrev_b32 v13, 1, v3\nv_lshl_add_u32 v12, v13, 4, v12\nv_add_u32 v13, 32768, v12")
    a("s_mov_b32 s39, 0\ns_branch L_pc")
    a.label("L_pl")
    a("s_sleep 1\n" + poll + "\ns_add_u32 s39, s39, 1\ns_cmp_gt_u32 s39, 0x80000\ns_cbranch_scc1 L_pd")
    a.label("L_pc")
    a("s_waitcnt vmcnt(0)\nv_cmp_ne_u64 vcc, v[8:9], v[4:5]\ns_cbranch_vccnz L_pl")
    a.label("L_pd")
    pt(a, "pd")
    issue(a, hl(3, 1)+hl(0, 0)+hl(0, 1))
    ph(2, 1, LB, hl(1, 0)+hl(1, 1), 5)
    ph(3, 0, L0, hl(2, 0)+hl(2, 1), 6)
    ph(3, 1, "s_waitcnt vmcnt(12) lgkmcnt(0)\ns_barrier", hl(3, 0))
    a("s_mov_b32 s39, 0")
    pt(a, "l2")
    a.label("L2_loop")
    for s in range(4):
        ph(s, 0, "s_waitcnt vmcnt(12) lgkmcnt(0)", hl((s-1) % 4, 1))
        ph(s, 1, "s_waitcnt vmcnt(12) lgkmcnt(0)\ns_barrier", hl(s, 0), extra=("s_add_u32 s39, s39, 1\ns_cmp_lt_u32 s39, 5" if s == 3 else None))
    a("s_cbranch_scc1 L2_loop")
    XT = O("xt", 2); KX = 56 - 2*XT; R = 96
    P = [[(k, t) for t in range(8)] for k in range(48, KX)]
    P += [[(k+e, t) for e in range(2) for t in range(4, 8)] for k in range(KX, 56, 2)]
    NY = len(P)
    P += [[(k+e, t) for e in range(2) for t in range(4)] for k in range(KX, 56, 2)]
    snd = []
    for q in range(8):
        snd += ["\n".join(f"v_accvgpr_read_b32 v{R+4*q+e}, a{96+4*q+e}" for e in range(4)),
                "\n".join(f"v_and_or_b32 v{R+4*q+e}, v{R+4*q+e}, v14, s{20+e}" for e in range(4)) + f"\nbuffer_store_dwordx4 v[{R+4*q}:{R+4*q+3}], v2, s[48:51], s{24+(q>>2)} offen offset:{(q&3)*1024} sc1"]
    QO = [0, 2, 4, 6, 1, 3, 5, 7]
    rcv = [f"buffer_load_dwordx4 v[{R+4*q}:{R+4*q+3}], v2, s[48:51], s{26+(q>>2)} offen offset:{(q&3)*1024} sc1" for q in QO]
    yf = {}; spread(yf, snd, 1, O("sn", 1), O("sd", 1)); RP = O("rp", 16)
    assert max(yf) < 16*XT - RP or RP == 0
    FM = O("fm", 1); xflag = f"s_waitcnt vmcnt({O('fw', 0)})\nbuffer_store_dwordx2 v[4:5], v7, s[48:51], s18 offen sc1"
    if FM: yf.setdefault(16*XT - 1 - RP, []).append(xflag)
    for n, x in enumerate([] if FM else rcv): yf.setdefault(min(16*XT - 1, 16*XT - RP + n*O("rs", 1)), []).append(x)
    bar = 0
    for n, p in enumerate(P):
        km = max(k for k, t in p); pre = (f"s_waitcnt vmcnt({min(12, 2*(55-km))}) lgkmcnt(0)" if n < NY else L0)
        f = {}
        if n < 7:
            sn = (max(k for k, t in P[n+1]) >> 1) % 4
            if sn > bar: assert sn == bar + 1; bar = sn; pre += "\ns_barrier"
            spread(f, [f"ds_read_b64_tr_b16 a[{WB2[1-(n&1)]+m*4+i*2}:{WB2[1-(n&1)]+m*4+i*2+1}], v{VT2+t} offset:{(k-48)*8192+i*4096}" for m, (k, t) in enumerate(P[n+1]) for i in range(2)], 0, O("rn2", 2), O("rd2", 3))
        f[-1] = [pre]
        if n == 0:
            for pp, (_, x) in zip([1, 2, 3, 5], hl(3, 1)): f.setdefault(pp, []).append(x)
        if n == NY: pt(a, "xs")
        if n >= NY:
            for i in range(16): f.setdefault(i, []).extend(yf.get(16*(n-NY)+i, []))
        interleave(a, [f"v_mfma_f32_16x16x32_bf16 {acc2(t, mt)}, a[{WB2[n&1]+m*4}:{WB2[n&1]+m*4+3}], {hreg((k>>1)%4, k&1, mt)}, {acc2(t, mt)}" for m, (k, t) in enumerate(p) for mt in range(2)], f)
    assert bar == 3
    pt(a, "e2")
    a("s_mov_b32 s39, 0" + ("" if FM else "\ns_branch L_xc"))
    a.label("L_xl")
    if FM: a(f"s_sleep {O('xsl', 1)}\nbuffer_load_dwordx2 v[8:9], v7, s[48:51], s19 offen sc1\ns_add_u32 s39, s39, 1\ns_cmp_gt_u32 s39, 0x80000\ns_cbranch_scc1 L_xd\ns_waitcnt vmcnt(0)\nv_cmp_ne_u64 vcc, v[8:9], v[4:5]\ns_cbranch_vccnz L_xl"); pt(a, "xp")
    else: a(f"s_sleep {O('xsl', 1)}\nbuffer_load_dword v8, v7, s[48:51], s27 offen offset:4092 sc1\ns_add_u32 s39, s39, 1\ns_cmp_gt_u32 s39, 0x80000\ns_cbranch_scc1 L_xd\ns_waitcnt vmcnt(0)\nv_and_b32 v8, 0xff, v8\nv_cmp_ne_u32 vcc, s23, v8\ns_cbranch_vccnz L_xl")
    for x in rcv: a(x)
    a.label("L_xc")
    for n, q in enumerate(QO):
        r = R + 4*q
        a(f"s_waitcnt vmcnt({7-n})\n" + "\n".join(f"v_xor_b32 v{r+e}, s{20+e}, v{r+e}" for e in range(4)))
        a((f"v_or_b32 v15, v{r}, v{r+1}" if n == 0 else f"v_or3_b32 v15, v15, v{r}, v{r+1}") + f"\nv_or3_b32 v15, v15, v{r+2}, v{r+3}")
    a("v_and_b32 v15, 0xff, v15\nv_cmp_ne_u32 vcc, 0, v15\ns_cbranch_vccnz L_xl")
    a.label("L_xd")
    pt(a, "xd")
    for qp in range(4):
        mt, tp = qp >> 1, qp & 1
        o = own(qp, 0)
        for h in range(2):
            r = R + 4*((2*tp+h)*2+mt); d = own(2*tp+h, mt) + 8
            for e in (0, 2): a(f"v_pk_add_f32 v[{d+e}:{d+e+1}], v[{d+e}:{d+e+1}], v[{r+e}:{r+e+1}]")
            a(f"v_cvt_pk_bf16_f32 v{o+2*h}, v{d}, v{d+1}\nv_cvt_pk_bf16_f32 v{o+2*h+1}, v{d+2}, v{d+3}")
        a(f"s_nop 1\nv_permlane16_swap_b32 v{o}, v{o+2}\nv_permlane16_swap_b32 v{o+1}, v{o+3}")
        a(f"buffer_store_dwordx4 v[{o}:{o+3}], v{12+mt}, s[32:35], 0 offen offset:{tp*64} {FL('of')}")
    if STAMP: a("s_waitcnt vmcnt(0)")
    stamp(a, 6); stamp_rt(a, 7)
    stamp_out(a, 8, 0x8000000)
    a.label("L1_end")
    return a.text()

def kern(name, body, vgpr, accum):
    return f""".globl {name}
.p2align 8
.type {name},@function
{name}:
{body}
    s_endpgm
""", f""".amdhsa_kernel {name}
  .amdhsa_next_free_vgpr {vgpr}
  .amdhsa_next_free_sgpr 102
  .amdhsa_accum_offset {accum}
  .amdhsa_group_segment_fixed_size 0
  .amdhsa_kernarg_size 64
  .amdhsa_user_sgpr_count 2
  .amdhsa_user_sgpr_kernarg_segment_ptr 1
  .amdhsa_system_sgpr_workgroup_id_x 1
.end_amdhsa_kernel
"""
k1, d1 = kern(NAME + "_kernel", fused(), 256, 128)
hdr = "".join(l for l in open("cdna_kernels/" + NAME + ".s.ref").readlines()[:9])
out = hdr + f"""; @launch grid=(256,1,1) block=(512,1,1) lds={LDS1}
.amdgcn_target "amdgcn-amd-amdhsa--gfx950"
.text
{k1}.section .rodata,"a"
.p2align 6
{d1}"""
open(sys.argv[1], "w").write(out)
```

```python
import sys
NAME = "standalone__dense_activation_squared_relu__prompt"
opts = dict(a.split("=") for a in sys.argv[2:])
STAMP = int(opts.get("stamp", 0))
NOMFMA = int(opts.get("nomfma", 0))
NOTR = int(opts.get("notr", 0))
HST = opts.get("hst", "")
HST = HST.replace("+", " ")

class A:
    def __init__(s): s.l = []
    def __call__(s, t):
        for x in t.strip("\n").split("\n"): s.l.append("    " + x.strip())
    def label(s, n): s.l.append(n + ":")
    def text(s): return "\n".join(s.l)

def interleave(a, mfmas, fillers):
    for x in fillers.get(-1, []): a(x)
    for i, m in enumerate(mfmas):
        a(m if not NOMFMA else "s_nop 0")
        for x in fillers.get(i, []): a(x)

def srd(a, d, lo, hi, nrec):
    a(f"s_mov_b32 s{d}, s{lo}\ns_and_b32 s{d+1}, s{hi}, 0xffff\ns_mov_b32 s{d+2}, {nrec}\ns_mov_b32 s{d+3}, 0x20000")

def stamp(a, i):
    if STAMP: a(f"s_memtime s[{70+2*i}:{71+2*i}]")
def stamp_rt(a, i):
    if STAMP: a(f"s_memrealtime s[{70+2*i}:{71+2*i}]")
def stamp_out(a, n, wsoff, ws=None):
    if not STAMP: return
    a("s_load_dwordx2 s[60:61], s[0:1], 56\ns_waitcnt lgkmcnt(0)")
    a(f"s_add_u32 s60, s60, {wsoff}\ns_addc_u32 s61, s61, 0")
    srd(a, 64, 60, 61, 0x100000)
    a("s_lshl_b32 s62, s2, 2\ns_add_u32 s62, s62, s3\ns_lshl_b32 s62, s62, 6\nv_mov_b32 v0, s62")
    for i in range(n):
        a(f"v_mov_b32 v1, s{70+2*i}\nbuffer_store_dword v1, v0, s[64:67], 0 offen offset:{4*i}")
    a("s_waitcnt vmcnt(0)")


O = lambda k, d: int(opts.get(k, d))
FL = lambda k, d="": opts.get(k, d).replace("+", " ")
LDS1 = 141312
HOFF = 0x10000
XFL = 0x2080000
R2 = O("r2", 4); LDS2 = 16384*R2
FLAG = 0x2000000
XCH = 0x2100000
def spread(f, items, start, step_num, step_den):
    for n, x in enumerate(items): f.setdefault(start + n*step_num//step_den, []).append(x)
def adv(pos, cnt, base, WN):
    return [f"s_add_u32 s{pos}, s{pos}, 1\ns_cmp_eq_u32 s{pos}, {WN}", f"s_cselect_b32 s{pos}, 0, s{pos}\ns_add_u32 s{cnt}, s{cnt}, 1",
            f"s_cmp_eq_u32 s{cnt}, {WN}\ns_cselect_b32 s16, {WN}, 0", f"s_cselect_b32 s{cnt}, 0, s{cnt}\ns_add_u32 s{base}, s{base}, s16", f"s_add_u32 s16, s{base}, s{pos}"]
SEL = opts.get("sp", "l1,e1,pd,e2").split(",")
def pt(a, n):
    if n in SEL: stamp(a, 2 + SEL.index(n))
def advt(r, lim, inc, span):
    return [f"s_add_u32 s{r}, s{r}, {inc}\ns_cmp_ge_u32 s{r}, s{lim}", f"s_cselect_b32 s17, {span}, 0\ns_sub_u32 s{r}, s{r}, s17"]

WS = [0, 28672, 106496]; XS = [57344, 73728, 90112]; LB2 = 73728; LBI = 139264
def issue(a, l):
    for pre, x in l:
        if pre: a(pre + "\ns_nop 0")
        a(x)
def kmap(v, dst, own, sh, base=None):
    if O("r2", 0): own = 63
    return f"s_cmp_ge_u32 s{v}, s{own}\ns_cselect_b32 s17, {-56 if O('r2', 0) else 7}, 0\ns_add_u32 s17, s17, s{v}\n" + ("s_cmp_ge_u32 s17, s63\ns_cselect_b32 s15, 56, 0\ns_sub_u32 s17, s17, s15\n" if O("r3", 0) else "") + f"s_lshl_b32 s{dst}, s17, {sh}" + (f"\ns_add_u32 s{dst}, s{dst}, s{base}" if base else "")

def producer(a):
    VD = 16; VX = 24; VD2 = 28
    a("s_sub_u32 s3, s3, 4")
    a("v_lshrrev_b32 v2, 3, v0\nv_and_b32 v4, 7, v0\nv_xor_b32 v4, v4, v3\ns_lshl_b32 s16, s3, 16\nv_lshlrev_b32 v2, 11, v2\nv_add_u32 v2, s16, v2")
    a(f"v_lshl_add_u32 v{VX}, v4, 4, v2\nv_xor_b32 v4, 4, v4\nv_lshl_add_u32 v{VX+1}, v4, 4, v2\nv_add_u32 v{VX+2}, {2*15360}, v{VX}\nv_add_u32 v{VX+3}, {3*15360}, v{VX+1}\nv_add_u32 v{VX+1}, 15360, v{VX+1}")
    a("s_mul_i32 s36, s3, 7168\ns_lshl_b32 s43, s3, 12\ns_mov_b32 s15, 9363\ns_mul_i32 s40, s3, 16*7168\ns_lshl_b32 s16, s12, 18\ns_mul_i32 s41, s13, 448")
    WN = O("wn1", 1)
    a(f"s_mul_i32 s60, s18, {O('sm1', 0)}\ns_mul_i32 s61, s19, {O('sf1', 0)}\ns_add_u32 s60, s60, s61\ns_and_b32 s60, s60, {WN-1}\ns_mov_b32 s61, 0\ns_mov_b32 s62, 0\ns_mul_i32 s37, s60, 458752\ns_lshl_b32 s38, s60, 7")
    a("s_waitcnt lgkmcnt(0)")
    a("s_add_u32 s20, s4, s16\ns_addc_u32 s21, s5, 0\ns_and_b32 s21, s21, 0xffff\ns_mov_b32 s22, 262144\ns_mov_b32 s23, 0x20000")
    def lds(slot):
        r = [(f"s_add_u32 m0, s43, {XS[slot]}" if i == 0 else "", f"buffer_load_dwordx4 v{VX+i}, s[20:23], s38 offen offset:{i*1024} lds") for i in range(4)]
        return r + [(f"s_add_u32 m0, s36, {WS[slot]+(i&4)*1024}" if i in (0, 4) else "", f"buffer_load_dwordx4 v{VD+i}, s[24:27], s37 offen offset:{(i&3)*1024} lds") for i in range(7)]
    issue(a, lds(0)[:4])
    a("s_add_u32 s24, s6, s41\ns_addc_u32 s25, s7, 0\ns_and_b32 s25, s25, 0xffff\ns_sub_u32 s26, 7340032, s41\ns_mov_b32 s27, 0x20000")
    for i in range(7):
        a(f"v_add_u32 v2, {64*i}, v0\nv_mul_u32_u24 v7, s15, v2\nv_lshrrev_b32 v7, 18, v7\nv_mul_u32_u24 v4, 28, v7\nv_sub_u32 v4, v2, v4")
        a(f"v_lshrrev_b32 v5, 2, v7\nv_and_b32 v5, 2, v5\nv_xor_b32 v4, v4, v5\nv_mul_u32_u24 v7, 7168, v7\nv_lshl_add_u32 v7, v4, 4, v7")
        a(f"v_add_u32 v7, s40, v7\nv_subrev_u32 v{VD+i}, {(i&3)*1024}, v7")
        issue(a, lds(0)[4+i:5+i])
        if i == O("pfat", 2):
            a("s_lshl_b32 s42, s2, 2\ns_add_u32 s42, s42, s3\ns_lshl_b32 s16, s42, 12\ns_add_u32 s28, s4, s16\ns_addc_u32 s29, s5, 0")
            a(f"s_mul_i32 s16, s42, 896\ns_add_u32 s16, s16, {PF0//2*917504}\ns_add_u32 s30, s6, s16\ns_addc_u32 s31, s7, 0")
            for x in pf(O("q0", 11)): a(x)
    nx = "s_add_u32 s37, s37, 458752\ns_add_u32 s38, s38, 128"
    if WN > 1: nx = "\n".join(adv(60, 61, 62, WN)) + "\ns_mul_i32 s37, s16, 458752\ns_lshl_b32 s38, s16, 7"
    srd(a, 48, 4, 5, 4194304); srd(a, 56, 6, 7, 7340032)
    VTS = dict((int(z.split(":")[0]), tuple(map(int, z.split(":")[1:]))) for z in opts.get("vt", "").split(",") if z)
    def vt(k):
        if k not in VTS: return 0
        s0, s1 = VTS[k]; n1 = s1 - s0; nl = (n1*3584 + 1023)//1024
        a(f"v_min_u32 v2, {2*n1-1}, v0\nv_and_b32 v4, 1, v2\nv_lshrrev_b32 v2, 1, v2\nv_lshlrev_b32 v2, 7, v2\nv_lshl_add_u32 v2, v4, 11, v2\ns_lshl_b32 s16, s42, 12\nbuffer_load_dword v8, v2, s[48:51], s16 offen offset:{128*s0}")
        a(f"v_min_u32 v2, {nl-1}, v0\nv_lshlrev_b32 v2, 7, v2\ns_mul_i32 s16, s42, {n1*448}\ns_and_b32 s16, s16, 0xffffff80\ns_add_u32 s16, s16, {458752*s0}\nbuffer_load_dword v9, v2, s[56:59], s16 offen")
        return 2
    NT = vt(0)
    a(nx); issue(a, lds(1)); a(nx)
    n1_ = vt(1); NT += n1_
    srd(a, 52, 10, 11, 7340032)
    a("v_and_b32 v4, 15, v0\nv_lshlrev_b32 v5, 1, v3\nv_xor_b32 v4, v4, v5\ns_and_b32 s16, s3, 1\ns_lshl_b32 s16, s16, 15\ns_lshl_b32 s17, s19, 8\ns_add_u32 s16, s16, s17\nv_lshlrev_b32 v2, 11, v3\nv_add_u32 v2, s16, v2")
    a(f"v_lshl_add_u32 v{VD2}, v4, 4, v2\nv_xor_b32 v4, 8, v4\nv_lshl_add_u32 v{VD2+1}, v4, 4, v2\nv_add_u32 v{VD2+2}, {2*7168}, v{VD2}\nv_add_u32 v{VD2+3}, {3*7168}, v{VD2+1}\nv_add_u32 v{VD2+1}, 7168, v{VD2+1}")
    a(f"s_waitcnt vmcnt({11+NT})\ns_barrier")
    a("s_lshl_b32 s16, s12, 2\ns_add_u32 s16, s16, s3\ns_lshr_b32 s17, s16, 1\ns_lshl_b32 s17, s17, 11\ns_and_b32 s16, s16, 1\ns_lshl_b32 s16, s16, 7\ns_add_u32 s16, s16, s17\ns_lshl_b32 s17, s19, 8\ns_add_u32 s16, s16, s17\ns_add_u32 s32, s10, s16\ns_addc_u32 s33, s11, 0")
    a(f"s_mul_i32 s94, s13, 7\ns_mul_i32 s95, s14, 56\n" + ("s_add_u32 s63, s95, 56\ns_add_u32 s95, s94, 7\n" if O("r2", 0) else "") + (f"s_add_u32 s63, s95, 56\ns_and_b32 s17, s19, {O('r3', 0)}\ns_mul_i32 s17, s17, 7\ns_add_u32 s95, s95, s17\n" if O("r3", 0) else "") + f"s_lshr_b32 s97, s3, 1\ns_add_u32 s96, s95, s97\ns_sub_u32 s96, s96, 1\ns_add_u32 s43, s43, 0\ns_lshl_b32 s86, s3, 12\ns_add_u32 s86, s86, {LB2}")
    def mix(l, q):
        p = pf(q); k = 0
        for n, it in enumerate(l):
            issue(a, [it])
            while k < len(p) and k < (n+1)*len(p)//len(l): a(p[k]); k += 1
    def w2(st):
        if st < 3: pre = f"s_add_u32 s17, s94, s97\ns_add_u32 s17, s17, {2*st}\ns_lshl_b32 s98, s17, 16"
        elif st == 3: pre = kmap(96, 98, 94, 16) + f"\ns_add_u32 s17, s94, 6\ns_lshl_b32 s17, s17, 16\ns_cmp_eq_u32 s97, 0\ns_cselect_b32 s98, s17, s98\ns_add_u32 s96, s96, 2"
        else: pre = kmap(96, 98, 94, 16) + "\ns_add_u32 s96, s96, 2"
        return [(pre + f"\ns_add_u32 m0, s86, {(st%4)*16384}" if i == 0 else "", f"buffer_load_dwordx4 v{VD2+i}, s[52:55], s98 offen offset:{i*1024} lds") for i in range(4)]
    QS = O("qs", 5)
    mix(lds(2), O("q1", 6)); a(nx)
    TL = [int(z) for z in opts.get("tl", "15").split(",")]; TC = -(-56 // len(TL))
    a(f"s_mul_i32 s16, s42, 7168\nv_min_u32 v10, {TC-1}, v0\nv_lshlrev_b32 v10, 7, v10\nv_add_u32 v10, s16, v10")
    TW = O("tw", 15); prev = n1_; cur = vt(2)
    for s in range(15):
        a(f"s_waitcnt vmcnt({(11 if s < 14 else 4) + prev + cur})\ns_barrier")
        prev = cur; cur = 0
        if s < 13:
            mix(lds(s % 3), QS); a(nx); cur = vt(s+3)
            if s+3 in TL: a(f"buffer_load_dword v11, v10, s[52:55], 0 offen\nv_add_u32 v10, {TC*128}, v10"); cur += 1
        elif s == 13: mix(w2(0), QS)
        else: mix(sum((w2(z) for z in range(1, 4-O("wd", 0))), []), O("q2", 20))
    a(f"s_waitcnt vmcnt({12-4*O('wd', 0)})\ns_barrier")
    for z in range(4-O("wd", 0), 4): issue(a, w2(z))
    for s in range(27):
        a(f"s_waitcnt vmcnt({4*min(2, 26-s)})\ns_barrier")
        if s < 24: mix(w2(s+4), O("q3", 3))
    assert not PFL, len(PFL)
    a("s_waitcnt lgkmcnt(0)\ns_endpgm")
PF0 = O("pf0", 16)
PFL = []
for p in range(PF0//2, 8):
    PFL += [f"s_load_dword s34, s[28:29], {r*2048 + 2*p*128 + e*64}" for e in range(4) for r in range(2)]
    PFL += [f"s_load_dword s34, s[30:31], {i*64}" for i in range(13)] + ["s_load_dword s34, s[30:31], 832\ns_add_u32 s30, s30, 917504\ns_addc_u32 s31, s31, 0"]
L2_ = "s_add_u32 s35, s35, 64\ns_load_dword s34, s[32:33], s35"
for q in range(O("pw2", 0)):
    PFL += [f"s_add_u32 s17, s94, {q}\ns_lshl_b32 s35, s17, 16\ns_load_dword s34, s[32:33], s35" if q < 7 else kmap(95, 35, 94, 16) + "\ns_load_dword s34, s[32:33], s35\ns_add_u32 s95, s95, 1", L2_]
def pf(n):
    r = PFL[:n]; del PFL[:n]; return r

def fused():
    a = A()
    ACC = 16; WB = [0, 56]; XB = [112, 120]; VT = 10; VXR = 14
    stamp_rt(a, 0); stamp(a, 1)
    a("s_cmp_ge_u32 s2, 256\ns_cbranch_scc1 L1_end")
    a("s_load_dwordx4 s[4:7], s[0:1], 0\ns_load_dwordx4 s[8:11], s[0:1], 16\ns_load_dwordx4 s[88:91], s[0:1], 32\ns_load_dwordx4 s[44:47], s[0:1], 48")
    a("v_lshrrev_b32 v1, 6, v0\nv_and_b32 v0, 63, v0\ns_lshr_b32 s13, s2, 3\nv_readfirstlane_b32 s3, v1\nv_lshrrev_b32 v3, 4, v0")
    a("s_and_b32 s18, s13, 3\ns_lshr_b32 s19, s13, 2")
    a("s_and_b32 s12, s2, 3\ns_lshl_b32 s12, s12, 2\ns_add_u32 s12, s12, s18")
    a("s_and_b32 s13, s2, 4\ns_lshr_b32 s14, s13, 2\ns_lshl_b32 s13, s13, 1\ns_add_u32 s13, s13, s19")
    a("s_cmp_lt_u32 s3, 4\ns_cbranch_scc1 L_main")
    producer(a)
    a.label("L_main")
    if O("cp", 0):
        CPN = O("cp", 0)
        a(f"s_cmp_lg_u32 s3, 0\ns_cbranch_scc1 L_ncp\ns_getpc_b64 s[20:21]")
        a.label("L_gpc")
        a(f"s_lshr_b32 s16, s2, 3\ns_and_b32 s16, s16, {CPN-1}\ns_mul_i32 s16, s16, {176//CPN}\nv_min_u32 v4, {176//CPN-1}, v0\nv_add_u32 v4, s16, v4\nv_lshlrev_b32 v4, 7, v4\nv_min_u32 v4, L1_end-{NAME}_kernel, v4")
        a(f"s_sub_u32 s20, s20, L_gpc-{NAME}_kernel\ns_subb_u32 s21, s21, 0\nv_mov_b32 v5, s21\nv_add_co_u32 v4, vcc, s20, v4\nv_addc_co_u32 v5, vcc, 0, v5, vcc\nglobal_load_dword v8, v[4:5], off")
        a.label("L_ncp")
    a(f"s_lshl_b32 s16, s3, 9\ns_add_u32 m0, s16, {LBI}\nv_lshlrev_b32 v2, 2, v0\nv_lshlrev_b32 v6, 3, v3\nv_add_u32 v6, m0, v6\ns_mul_i32 s16, s13, 448")
    a("s_waitcnt lgkmcnt(0)\ns_add_u32 s8, s8, s16\ns_addc_u32 s9, s9, 0")
    srd(a, 28, 8, 9, 448)
    a("buffer_load_dword v2, s[28:31], 0 offen lds\nbuffer_load_dword v2, s[28:31], 0 offen offset:256 lds")
    srd(a, 48, 46, 47, 0x4000000); srd(a, 56, 44, 45, 256)
    a("v_mov_b32 v7, 0\ns_or_b32 s16, s2, s3\ns_cmp_eq_u32 s16, 0\ns_cbranch_scc0 L_nn0\ns_load_dwordx2 s[92:93], s[46:47], 0\ns_waitcnt lgkmcnt(0)\ns_add_u32 s92, s92, 1\ns_or_b32 s93, s93, 1\nv_mov_b32 v4, s92\nv_mov_b32 v5, s93")
    a("s_waitcnt vmcnt(0)\nbuffer_store_dwordx2 v[4:5], v7, s[56:59], 0 offen sc1\nbuffer_store_dwordx2 v[4:5], v7, s[48:51], 0 offen\ns_branch L_nn1")
    a.label("L_nn0"); a("s_waitcnt vmcnt(0)"); a.label("L_nn1")
    for t in range(14): a(f"ds_read_b64 v[{ACC+t*8+6}:{ACC+t*8+7}], v6 offset:{32*t}")
    a("s_lshl_b32 s16, s19, 8\ns_lshl_b32 s17, s14, 7\ns_add_u32 s16, s16, s17\ns_add_u32 s88, s88, s16\ns_addc_u32 s89, s89, 0")
    srd(a, 28, 88, 89, 128)
    a("s_lshl_b32 s17, s12, 18\ns_add_u32 s16, s16, s17\ns_add_u32 s90, s90, s16\ns_addc_u32 s91, s91, 0\ns_sub_u32 s17, 4194304, s16")
    srd(a, 32, 90, 91, "s17")
    a(f"s_mul_i32 s94, s13, 7\ns_mul_i32 s95, s14, 56\n" + ("s_add_u32 s63, s95, 56\ns_add_u32 s95, s94, 7\n" if O("r2", 0) else "") + (f"s_add_u32 s63, s95, 56\ns_and_b32 s17, s19, {O('r3', 0)}\ns_mul_i32 s17, s17, 7\ns_add_u32 s95, s95, s17\n" if O("r3", 0) else "") + f"s_mul_i32 s98, s12, 112*8192\ns_add_u32 s98, s98, {HOFF}\ns_lshl_b32 s99, s94, 13\ns_add_u32 s99, s99, s98")
    a(f"s_and_b32 s16, s2, 7\ns_lshl_b32 s16, s16, 2\ns_add_u32 s16, s16, s18\ns_lshl_b32 s16, s16, 2\ns_add_u32 s16, s16, s3\ns_lshl_b32 s16, s16, 7\ns_add_u32 s87, s16, {FLAG}\ns_lshl_b32 s16, s19, 3\ns_add_u32 s86, s87, s16")
    a("v_lshrrev_b32 v2, 2, v0\nv_and_b32 v2, 3, v2\nv_lshl_add_u32 v2, v3, 3, v2\nv_mul_u32_u24 v2, 448, v2\nv_and_b32 v8, 3, v0\nv_lshl_add_u32 v2, v8, 3, v2")
    a(f"v_and_b32 v8, 1, v3\nv_lshlrev_b32 v8, 5, v8\nv_add_u32 v{VT}, v2, v8\nv_xor_b32 v8, 32, v8\nv_add_u32 v{VT+1}, v2, v8\nv_add_u32 v{VT+2}, {WS[2]}, v{VT}\nv_add_u32 v{VT+3}, {WS[2]}, v{VT+1}")
    a(f"s_lshl_b32 s16, s3, 12\ns_add_u32 s16, s16, {XS[0]}\nv_and_b32 v2, 15, v0\nv_lshrrev_b32 v8, 1, v2\nv_xor_b32 v8, v8, v3\nv_lshlrev_b32 v2, 7, v2\nv_lshl_add_u32 v2, v8, 4, v2\nv_add_u32 v{VXR}, s16, v2\nv_xor_b32 v{VXR+1}, 64, v{VXR}")
    a("s_lshl_b32 s16, s3, 11\nv_lshlrev_b32 v1, 4, v0\nv_add_u32 v1, s16, v1\ns_waitcnt lgkmcnt(0)")
    TP = O("tp", 0)
    if TP:
        a("s_cmp_lg_u32 s3, 1\ns_cbranch_scc1 L_ntp")
        if TP & 1: a("buffer_load_dword v9, v7, s[48:51], s99 offen")
        if TP & 2: a(f"s_xor_b32 s16, s2, 4\ns_lshl_b32 s16, s16, 15\ns_add_u32 s16, s16, {XCH}\nbuffer_load_dword v9, v7, s[48:51], s16 offen")
        if TP & 4: a("s_mov_b32 s16, 0x20c0000\nbuffer_load_dword v9, v7, s[48:51], s16 offen")
        if TP & 8: a("buffer_load_dword v9, v7, s[32:35], 0 offen")
        if TP & 16:
            srd(a, 52, 10, 11, 7340032)
            a("s_mul_i32 s16, s14, 3670016\nv_and_b32 v2, 7, v0\nv_lshlrev_b32 v2, 19, v2\nbuffer_load_dword v9, v2, s[52:55], s16 offen")
        a.label("L_ntp")
    for t in range(14):
        d = ACC + t*8
        a(f"v_lshlrev_b32 v{d}, 16, v{d+6}\nv_and_b32 v{d+1}, 0xffff0000, v{d+6}\nv_lshlrev_b32 v{d+2}, 16, v{d+7}\nv_and_b32 v{d+3}, 0xffff0000, v{d+7}\nv_pk_mov_b32 v[{d+4}:{d+5}], v[{d}:{d+1}], v[{d}:{d+1}] op_sel:[0,1]\nv_pk_mov_b32 v[{d+6}:{d+7}], v[{d+2}:{d+3}], v[{d+2}:{d+3}] op_sel:[0,1]")
    def rds(slot, j):
        r = [f"ds_read_b128 a[{XB[j]+mt*4}:{XB[j]+mt*4+3}], v{VXR+j} offset:{slot*16384+mt*2048}" for mt in range(2)]
        for t in range(14):
            for i in range(2):
                d = WB[j] + t*4 + i*2
                r.append(f"ds_read_b64_tr_b16 a[{d}:{d+1}], v{VT+(slot>>1)*2+(t&1)} offset:{(slot&1)*28672 + j*32*448 + i*4*448 + (t & ~1)*32}")
        return r
    pt(a, "w0"); a("s_barrier"); pt(a, "b0")
    for x in rds(0, 0): a(x)
    a("s_mov_b32 s39, 0")
    pt(a, "l1")
    def mf(j):
        return [f"v_mfma_f32_16x16x32_bf16 v[{ACC+(t*2+mt)*4}:{ACC+(t*2+mt)*4+3}], a[{WB[j]+t*4}:{WB[j]+t*4+3}], a[{XB[j]+mt*4}:{XB[j]+mt*4+3}], v[{ACC+(t*2+mt)*4}:{ACC+(t*2+mt)*4+3}]" for t in range(14) for mt in range(2)]
    RN, RD = O("rn", 2), O("rd", 3)
    def stage(s, last=False, extra=None):
        f = {-1: ["s_waitcnt lgkmcnt(0)"]}
        spread(f, rds(s, 1), 0, RN, RD)
        if last: f.setdefault(24, []).append("buffer_load_dwordx2 v[4:5], v7, s[56:59], 0 offen sc1\nv_lshlrev_b32 v2, 2, v0\nbuffer_load_dword v2, s[28:31], 0 offen lds")
        interleave(a, mf(0), f)
        f = {-1: ["s_waitcnt lgkmcnt(0)" + ("" if last else "\ns_barrier")]}
        if not last: spread(f, rds((s+1) % 3, 0), 0, RN, RD)
        if extra: f.setdefault(26, []).append(extra)
        interleave(a, mf(1), f)
    a.label("L1_loop")
    for s in range(3): stage(s, extra=("s_add_u32 s39, s39, 1\ns_cmp_lt_u32 s39, 5" if s == 2 else None))
    a("s_cbranch_scc1 L1_loop")
    IE = O("ie", 0)
    if not IE: stage(0, last=True)
    pt(a, "e1")
    WB2 = [0, 32]; VT2 = 88; B2 = 104; VH = 1
    HF = FL("hf", "sc1"); HS = FL("hs", "sc1")
    own = lambda u, mt: ACC + 16*u + 4*mt
    acc2 = lambda t, mt: (f"v[{ACC+16*t+8+4*mt}:{ACC+16*t+8+4*mt+3}]" if t < 4 else f"a[{96+(t-4)*8+4*mt}:{96+(t-4)*8+4*mt+3}]")
    hreg = lambda s, j, mt: (f"v[{own(2*s+j, mt)}:{own(2*s+j, mt)+3}]" if s < 2 else f"a[{64+(s-2)*16+(j*2+mt)*4}:{64+(s-2)*16+(j*2+mt)*4+3}]")
    def hl(s, j):
        km = kmap(95, 96, 94, 13, 98).split("\n")
        return [("", "\n".join(km[:3])), ("", "\n".join(km[3:]) + "\ns_add_u32 s95, s95, 1")] + [("", f"buffer_load_dwordx4 {hreg(s, j, mt)}, v{VH}, s[48:51], s96 offen offset:{mt*1024} {HF}") for mt in range(2)]
    def rds2(slot, j): return [f"ds_read_b64_tr_b16 a[{WB2[j]+t*4+i*2}:{WB2[j]+t*4+i*2+1}], v{VT2+t} offset:{slot*16384+j*8192+i*4096}" for t in range(8) for i in range(2)]
    def epi(u):
        r = []
        for mt in range(2):
            o = own(u, mt)
            for h in range(2):
                d = o + 8*h
                r.append("\n".join(f"v_max_f32 v{d+e}, 0, v{d+e}" for e in range(4)))
                r.append(f"v_pk_mul_f32 v[{d}:{d+1}], v[{d}:{d+1}], v[{d}:{d+1}]\nv_pk_mul_f32 v[{d+2}:{d+3}], v[{d+2}:{d+3}], v[{d+2}:{d+3}]\nv_cvt_pk_bf16_f32 v{o+2*h}, v{d}, v{d+1}\nv_cvt_pk_bf16_f32 v{o+2*h+1}, v{d+2}, v{d+3}")
            r[-1] += f"\nbuffer_store_dwordx4 v[{o}:{o+3}], v{VH}, s[48:51], s99 offen offset:{mt*1024} {HS}" + ("\ns_add_u32 s99, s99, 8192" if mt else "")
        return r
    if IE:
        G = [(0,0),(0,1),(0,2),(1,0),(0,3),(1,1),(0,4),(1,2),(0,5),(1,3),(0,6),(1,4),(1,5),(1,6)]
        f = {-1: ["s_waitcnt lgkmcnt(0)"]}; spread(f, rds(0, 1), 0, 1, 1)
        f[8].append("buffer_load_dwordx2 v[4:5], v7, s[56:59], 0 offen sc1\nv_lshlrev_b32 v2, 2, v0\nbuffer_load_dword v2, s[28:31], 0 offen lds")
        for n, (j, u) in enumerate(G):
            if j and u < 4: spread(f, epi(u), 4*n + 7, 1, 1)
        for n, (j, u) in enumerate(G):
            if j: f.setdefault(4*n - 1, []).append(f"s_waitcnt lgkmcnt({min(30, 4*n) - 6 - 4*u})")
        assert max(f) < 56
        interleave(a, [x for j, u in G for x in mf(j)[4*u:4*u+4]], f)
    for u in range(4 if IE else 0, 7):
        for x in epi(u): a(x)
        if u == 4:
            a(f"v_lshrrev_b32 v2, 2, v0\nv_and_b32 v8, 7, v2\ns_lshl_b32 s16, s14, 2\nv_xor_b32 v8, s16, v8\nv_lshlrev_b32 v2, 8, v2\nv_and_b32 v9, 3, v0\nv_lshl_add_u32 v2, v9, 3, v2\nv_add_u32 v2, {LB2}, v2")
            for t in range(8): a(f"v_xor_b32 v9, {t}, v8\nv_lshl_add_u32 v{VT2+t}, v9, 5, v2")
        if u == 5:
            a("s_waitcnt vmcnt(12)\ns_barrier")
            for t in range(4): a(f"ds_read_b64 v[{B2+2*t}:{B2+2*t+1}], v6 offset:{32*t}")
            for x in rds2(0, 0): a(x)
    a("v_and_b32 v11, 7, v0\nv_lshlrev_b32 v11, 3, v11\ns_waitcnt lgkmcnt(0)")
    for t in range(4):
        for mt in range(2):
            d = ACC+16*t+8+4*mt
            a(f"v_lshlrev_b32 v{d}, 16, v{B2+2*t}\nv_and_b32 v{d+1}, 0xffff0000, v{B2+2*t}\nv_lshlrev_b32 v{d+2}, 16, v{B2+2*t+1}\nv_and_b32 v{d+3}, 0xffff0000, v{B2+2*t+1}")
    a("v_readfirstlane_b32 s93, v5\ns_mov_b32 s39, 0\ns_cmp_lg_u32 s93, 0\ns_cbranch_scc1 L_nok")
    a.label("L_nsp")
    a("s_sleep 2\nbuffer_load_dwordx2 v[4:5], v7, s[56:59], 0 offen sc1\ns_add_u32 s39, s39, 1\ns_waitcnt vmcnt(0)\nv_readfirstlane_b32 s93, v5\ns_lshr_b32 s16, s39, 19\ns_or_b32 s16, s16, s93\ns_cmp_eq_u32 s16, 0\ns_cbranch_scc1 L_nsp")
    a.label("L_nok")
    pt(a, "g2")
    def mf2(s, j, ow, order, first):
        hr = lambda mt: (f"v[{own(ow, mt)}:{own(ow, mt)+3}]" if ow is not None else hreg(s, j, mt))
        return [f"v_mfma_f32_16x16x32_bf16 {acc2(t, mt)}, a[{WB2[j]+t*4}:{WB2[j]+t*4+3}], {hr(mt)}, {'0' if first and t >= 4 else acc2(t, mt)}" for t in order for mt in range(2)]
    def ph(s, j, pre, l, ow=None, last=False, extra=None, first=False):
        f = {-1: [pre]}
        if not last: spread(f, rds2(s, 1) if j == 0 else rds2((s+1) % 4, 0), 0, O("rn2", 2), O("rd2", 3))
        pos = [11, 12, 13, 15] if len(l) <= 4 else [2, 3, 4, 7, 11, 12, 13, 15]
        for p, (_, x) in zip(pos, l): f.setdefault(p, []).append(x)
        if extra: f.setdefault(14, []).append(extra)
        interleave(a, mf2(s, j, ow, [4,5,6,7,0,1,2,3] if last else range(8), first), f)
    L0 = "s_waitcnt lgkmcnt(0)"; LB = L0 + "\ns_barrier"
    poll = "buffer_load_dwordx2 v[8:9], v11, s[48:51], s87 offen sc1"
    ph(0, 0, L0, [], 0, first=True); ph(0, 1, LB, [], 1)
    ph(1, 0, "s_waitcnt vmcnt(0) lgkmcnt(0)\nbuffer_store_dwordx2 v[4:5], v7, s[48:51], s86 offen sc1", [], 2); ph(1, 1, LB, [], 3)
    pt(a, "p0")
    ph(2, 0, L0 + "\n" + poll, [], 4)
    a(f"v_readfirstlane_b32 s20, v4\ns_lshl_b32 s16, s2, 2\ns_add_u32 s16, s16, s3\ns_lshl_b32 s16, s16, 13\ns_add_u32 s26, s16, {XCH}\ns_add_u32 s27, s26, 4096\ns_xor_b32 s24, s26, {16<<13}\ns_add_u32 s25, s24, 4096\nv_lshlrev_b32 v2, 4, v0\ns_lshr_b32 s16, s16, 6\ns_add_u32 s19, s16, {XFL}\ns_xor_b32 s18, s19, {16<<7}")
    a("s_mul_i32 s20, s20, 0x01010101\ns_lshr_b32 s23, s20, 24\ns_bfe_u32 s22, s20, 0x80010\ns_bfe_u32 s21, s20, 0x80008\ns_and_b32 s20, s20, 0xff\nv_mov_b32 v14, 0xffffff00")
    a("v_and_b32 v12, 15, v0\nv_lshlrev_b32 v12, 11, v12\ns_lshl_b32 s15, s3, 16\nv_add_u32 v12, s15, v12\nv_and_b32 v13, 1, v3\nv_lshl_add_u32 v12, v13, 5, v12\nv_lshrrev_b32 v13, 1, v3\nv_lshl_add_u32 v12, v13, 4, v12\nv_add_u32 v13, 32768, v12")
    a("s_mov_b32 s39, 0\ns_branch L_pc")
    a.label("L_pl")
    a("s_sleep 1\n" + poll + "\ns_add_u32 s39, s39, 1\ns_cmp_gt_u32 s39, 0x80000\ns_cbranch_scc1 L_pd")
    a.label("L_pc")
    a("s_waitcnt vmcnt(0)\nv_cmp_ne_u64 vcc, v[8:9], v[4:5]\ns_cbranch_vccnz L_pl")
    a.label("L_pd")
    pt(a, "pd")
    issue(a, hl(3, 1)+hl(0, 0)+hl(0, 1))
    ph(2, 1, LB, hl(1, 0)+hl(1, 1), 5)
    ph(3, 0, L0, hl(2, 0)+hl(2, 1), 6)
    ph(3, 1, "s_waitcnt vmcnt(12) lgkmcnt(0)\ns_barrier", hl(3, 0))
    a("s_mov_b32 s39, 0")
    pt(a, "l2")
    a.label("L2_loop")
    for s in range(4):
        ph(s, 0, "s_waitcnt vmcnt(12) lgkmcnt(0)", hl((s-1) % 4, 1))
        ph(s, 1, "s_waitcnt vmcnt(12) lgkmcnt(0)\ns_barrier", hl(s, 0), extra=("s_add_u32 s39, s39, 1\ns_cmp_lt_u32 s39, 5" if s == 3 else None))
    a("s_cbranch_scc1 L2_loop")
    XT = O("xt", 2); KX = 56 - 2*XT; R = 96
    P = [[(k, t) for t in range(8)] for k in range(48, KX)]
    P += [[(k+e, t) for e in range(2) for t in range(4, 8)] for k in range(KX, 56, 2)]
    NY = len(P)
    P += [[(k+e, t) for e in range(2) for t in range(4)] for k in range(KX, 56, 2)]
    snd = []
    for q in range(8):
        snd += ["\n".join(f"v_accvgpr_read_b32 v{R+4*q+e}, a{96+4*q+e}" for e in range(4)),
                "\n".join(f"v_and_or_b32 v{R+4*q+e}, v{R+4*q+e}, v14, s{20+e}" for e in range(4)) + f"\nbuffer_store_dwordx4 v[{R+4*q}:{R+4*q+3}], v2, s[48:51], s{24+(q>>2)} offen offset:{(q&3)*1024} sc1"]
    QO = [0, 2, 4, 6, 1, 3, 5, 7]; XB16 = O("xb", 0)
    if XB16:
        assert O("fw", 0) == 0 and O("fm", 1)
        snd = []; QO = [0, 1, 2, 3]
        for qp in range(4):
            for h in range(2):
                q = (2*(qp & 1)+h)*2 + (qp >> 1); T = 80 + 4*h; o = R + 4*qp + 2*h
                snd += ["\n".join(f"v_accvgpr_read_b32 v{T+e}, a{96+4*q+e}" for e in range(4)), f"v_cvt_pk_bf16_f32 v{o}, v{T}, v{T+1}\nv_cvt_pk_bf16_f32 v{o+1}, v{T+2}, v{T+3}"]
            snd[-1] += f"\nbuffer_store_dwordx4 v[{R+4*qp}:{R+4*qp+3}], v2, s[48:51], s24 offen offset:{qp*1024} sc1"
    rcv = [f"buffer_load_dwordx4 v[{R+4*q}:{R+4*q+3}], v2, s[48:51], s{26+(q>>2)} offen offset:{(q&3)*1024} sc1" for q in QO]
    yf = {}; spread(yf, snd, 1, O("sn", 1), O("sd", 1)); RP = O("rp", 16)
    assert max(yf) < 16*XT - RP or RP == 0
    FM = O("fm", 1); xflag = f"s_waitcnt vmcnt({O('fw', 0)})\nbuffer_store_dwordx2 v[4:5], v7, s[48:51], s18 offen sc1"
    if FM: yf.setdefault(16*XT - 1 - RP, []).append(xflag)
    for n, x in enumerate([] if FM else rcv): yf.setdefault(min(16*XT - 1, 16*XT - RP + n*O("rs", 1)), []).append(x)
    bar = 0
    for n, p in enumerate(P):
        km = max(k for k, t in p); pre = (f"s_waitcnt vmcnt({min(12, 2*(55-km))}) lgkmcnt(0)" if n < NY else L0)
        f = {}
        if n < 7:
            sn = (max(k for k, t in P[n+1]) >> 1) % 4
            if sn > bar: assert sn == bar + 1; bar = sn; pre += "\ns_barrier"
            spread(f, [f"ds_read_b64_tr_b16 a[{WB2[1-(n&1)]+m*4+i*2}:{WB2[1-(n&1)]+m*4+i*2+1}], v{VT2+t} offset:{(k-48)*8192+i*4096}" for m, (k, t) in enumerate(P[n+1]) for i in range(2)], 0, O("rn2", 2), O("rd2", 3))
        f[-1] = [pre]
        if n == 0:
            for pp, (_, x) in zip([1, 2, 3, 5], hl(3, 1)): f.setdefault(pp, []).append(x)
        if n == NY: pt(a, "xs")
        if n >= NY:
            for i in range(16): f.setdefault(i, []).extend(yf.get(16*(n-NY)+i, []))
        interleave(a, [f"v_mfma_f32_16x16x32_bf16 {acc2(t, mt)}, a[{WB2[n&1]+m*4}:{WB2[n&1]+m*4+3}], {hreg((k>>1)%4, k&1, mt)}, {acc2(t, mt)}" for m, (k, t) in enumerate(p) for mt in range(2)], f)
    assert bar == 3
    pt(a, "e2")
    a("s_mov_b32 s39, 0" + ("" if FM else "\ns_branch L_xc"))
    a.label("L_xl")
    if FM: a(f"s_sleep {O('xsl', 1)}\nbuffer_load_dwordx2 v[8:9], v7, s[48:51], s19 offen sc1\ns_add_u32 s39, s39, 1\ns_cmp_gt_u32 s39, 0x80000\ns_cbranch_scc1 L_xd\ns_waitcnt vmcnt(0)\nv_cmp_ne_u64 vcc, v[8:9], v[4:5]\ns_cbranch_vccnz L_xl"); pt(a, "xp")
    else: a(f"s_sleep {O('xsl', 1)}\nbuffer_load_dword v8, v7, s[48:51], s27 offen offset:4092 sc1\ns_add_u32 s39, s39, 1\ns_cmp_gt_u32 s39, 0x80000\ns_cbranch_scc1 L_xd\ns_waitcnt vmcnt(0)\nv_and_b32 v8, 0xff, v8\nv_cmp_ne_u32 vcc, s23, v8\ns_cbranch_vccnz L_xl")
    for x in rcv: a(x)
    a.label("L_xc")
    for n, q in enumerate([] if XB16 else QO):
        r = R + 4*q
        a(f"s_waitcnt vmcnt({7-n})\n" + "\n".join(f"v_xor_b32 v{r+e}, s{20+e}, v{r+e}" for e in range(4)))
        a((f"v_or_b32 v15, v{r}, v{r+1}" if n == 0 else f"v_or3_b32 v15, v15, v{r}, v{r+1}") + f"\nv_or3_b32 v15, v15, v{r+2}, v{r+3}")
    if not XB16: a("v_and_b32 v15, 0xff, v15\nv_cmp_ne_u32 vcc, 0, v15\ns_cbranch_vccnz L_xl")
    a.label("L_xd")
    pt(a, "xd")
    for qp in range(4):
        mt, tp = qp >> 1, qp & 1
        o = own(qp, 0)
        for h in range(2):
            r = R + 4*((2*tp+h)*2+mt); d = own(2*tp+h, mt) + 8
            if XB16:
                r = 80 + 4*h; g = R + 4*qp + 2*h
                a(("s_waitcnt vmcnt(0)\n" if h == 0 and qp == 0 else "") + f"v_lshlrev_b32 v{r}, 16, v{g}\nv_and_b32 v{r+1}, 0xffff0000, v{g}\nv_lshlrev_b32 v{r+2}, 16, v{g+1}\nv_and_b32 v{r+3}, 0xffff0000, v{g+1}")
            for e in (0, 2): a(f"v_pk_add_f32 v[{d+e}:{d+e+1}], v[{d+e}:{d+e+1}], v[{r+e}:{r+e+1}]")
            a(f"v_cvt_pk_bf16_f32 v{o+2*h}, v{d}, v{d+1}\nv_cvt_pk_bf16_f32 v{o+2*h+1}, v{d+2}, v{d+3}")
        a(f"s_nop 1\nv_permlane16_swap_b32 v{o}, v{o+2}\nv_permlane16_swap_b32 v{o+1}, v{o+3}")
        a(f"buffer_store_dwordx4 v[{o}:{o+3}], v{12+mt}, s[32:35], 0 offen offset:{tp*64} {FL('of')}")
    if STAMP: a("s_waitcnt vmcnt(0)")
    stamp(a, 6); stamp_rt(a, 7)
    stamp_out(a, 8, 0x8000000)
    a.label("L1_end")
    return a.text()

def kern(name, body, vgpr, accum):
    return f""".globl {name}
.p2align 8
.type {name},@function
{name}:
{body}
    s_endpgm
""", f""".amdhsa_kernel {name}
  .amdhsa_next_free_vgpr {vgpr}
  .amdhsa_next_free_sgpr 102
  .amdhsa_accum_offset {accum}
  .amdhsa_group_segment_fixed_size 0
  .amdhsa_kernarg_size 64
  .amdhsa_user_sgpr_count 2
  .amdhsa_user_sgpr_kernarg_segment_ptr 1
  .amdhsa_system_sgpr_workgroup_id_x 1
.end_amdhsa_kernel
"""
k1, d1 = kern(NAME + "_kernel", fused(), 256, 128)
hdr = "".join(l for l in open("cdna_kernels/" + NAME + ".s.ref").readlines()[:9])
out = hdr + f"""; @launch grid=(256,1,1) block=(512,1,1) lds={LDS1}
.amdgcn_target "amdgcn-amd-amdhsa--gfx950"
.text
{k1}.section .rodata,"a"
.p2align 6
{d1}"""
open(sys.argv[1], "w").write(out)
```

```python
import sys
NAME = "standalone__dense_activation_squared_relu__prompt"
opts = dict(a.split("=") for a in sys.argv[2:])
STAMP = int(opts.get("stamp", 0))
NOMFMA = int(opts.get("nomfma", 0))
NOTR = int(opts.get("notr", 0))
HST = opts.get("hst", "")
HST = HST.replace("+", " ")

class A:
    def __init__(s): s.l = []
    def __call__(s, t):
        for x in t.strip("\n").split("\n"): s.l.append("    " + x.strip())
    def label(s, n): s.l.append(n + ":")
    def text(s): return "\n".join(s.l)

def interleave(a, mfmas, fillers):
    for x in fillers.get(-1, []): a(x)
    for i, m in enumerate(mfmas):
        a(m if not NOMFMA else "s_nop 0")
        for x in fillers.get(i, []): a(x)

def srd(a, d, lo, hi, nrec):
    a(f"s_mov_b32 s{d}, s{lo}\ns_and_b32 s{d+1}, s{hi}, 0xffff\ns_mov_b32 s{d+2}, {nrec}\ns_mov_b32 s{d+3}, 0x20000")

def stamp(a, i):
    if STAMP: a(f"s_memtime s[{70+2*i}:{71+2*i}]")
def stamp_rt(a, i):
    if STAMP: a(f"s_memrealtime s[{70+2*i}:{71+2*i}]")
def stamp_out(a, n, wsoff, ws=None):
    if not STAMP: return
    a("s_load_dwordx2 s[60:61], s[0:1], 56\ns_waitcnt lgkmcnt(0)")
    a(f"s_add_u32 s60, s60, {wsoff}\ns_addc_u32 s61, s61, 0")
    srd(a, 64, 60, 61, 0x100000)
    a("s_lshl_b32 s62, s2, 2\ns_add_u32 s62, s62, s3\ns_lshl_b32 s62, s62, 6\nv_mov_b32 v0, s62")
    for i in range(n):
        a(f"v_mov_b32 v1, s{70+2*i}\nbuffer_store_dword v1, v0, s[64:67], 0 offen offset:{4*i}")
    a("s_waitcnt vmcnt(0)")


O = lambda k, d: int(opts.get(k, d))
FL = lambda k, d="": opts.get(k, d).replace("+", " ")
LDS1 = 141312
HOFF = 0x10000
XFL = 0x2080000
R2 = O("r2", 4); LDS2 = 16384*R2
FLAG = 0x2000000
XCH = 0x2100000
def spread(f, items, start, step_num, step_den):
    for n, x in enumerate(items): f.setdefault(start + n*step_num//step_den, []).append(x)
def adv(pos, cnt, base, WN):
    return [f"s_add_u32 s{pos}, s{pos}, 1\ns_cmp_eq_u32 s{pos}, {WN}", f"s_cselect_b32 s{pos}, 0, s{pos}\ns_add_u32 s{cnt}, s{cnt}, 1",
            f"s_cmp_eq_u32 s{cnt}, {WN}\ns_cselect_b32 s16, {WN}, 0", f"s_cselect_b32 s{cnt}, 0, s{cnt}\ns_add_u32 s{base}, s{base}, s16", f"s_add_u32 s16, s{base}, s{pos}"]
SEL = opts.get("sp", "l1,e1,pd,e2").split(",")
def pt(a, n):
    if n in SEL: stamp(a, 2 + SEL.index(n))
def advt(r, lim, inc, span):
    return [f"s_add_u32 s{r}, s{r}, {inc}\ns_cmp_ge_u32 s{r}, s{lim}", f"s_cselect_b32 s17, {span}, 0\ns_sub_u32 s{r}, s{r}, s17"]

WS = [0, 28672, 106496]; XS = [57344, 73728, 90112]; LB2 = 73728; LBI = 139264
def issue(a, l):
    for pre, x in l:
        if pre: a(pre + "\ns_nop 0")
        a(x)
def kmap(v, dst, own, sh, base=None):
    if O("r2", 0): own = 63
    return f"s_cmp_ge_u32 s{v}, s{own}\ns_cselect_b32 s17, {-56 if O('r2', 0) else 7}, 0\ns_add_u32 s17, s17, s{v}\n" + ("s_cmp_ge_u32 s17, s63\ns_cselect_b32 s15, 56, 0\ns_sub_u32 s17, s17, s15\n" if O("r3", 0) else "") + f"s_lshl_b32 s{dst}, s17, {sh}" + (f"\ns_add_u32 s{dst}, s{dst}, s{base}" if base else "")

def producer(a):
    VD = 16; VX = 24; VD2 = 28
    a("s_sub_u32 s3, s3, 4")
    a("v_lshrrev_b32 v2, 3, v0\nv_and_b32 v4, 7, v0\nv_xor_b32 v4, v4, v3\ns_lshl_b32 s16, s3, 16\nv_lshlrev_b32 v2, 11, v2\nv_add_u32 v2, s16, v2")
    a(f"v_lshl_add_u32 v{VX}, v4, 4, v2\nv_xor_b32 v4, 4, v4\nv_lshl_add_u32 v{VX+1}, v4, 4, v2\nv_add_u32 v{VX+2}, {2*15360}, v{VX}\nv_add_u32 v{VX+3}, {3*15360}, v{VX+1}\nv_add_u32 v{VX+1}, 15360, v{VX+1}")
    a("s_mul_i32 s36, s3, 7168\ns_lshl_b32 s43, s3, 12\ns_mov_b32 s15, 9363\ns_mul_i32 s40, s3, 16*7168\ns_lshl_b32 s16, s12, 18\ns_mul_i32 s41, s13, 448")
    WN = O("wn1", 1)
    a(f"s_mul_i32 s60, s18, {O('sm1', 0)}\ns_mul_i32 s61, s19, {O('sf1', 0)}\ns_add_u32 s60, s60, s61\ns_and_b32 s60, s60, {WN-1}\ns_mov_b32 s61, 0\ns_mov_b32 s62, 0\ns_mul_i32 s37, s60, 458752\ns_lshl_b32 s38, s60, 7")
    a("s_waitcnt lgkmcnt(0)")
    a("s_add_u32 s20, s4, s16\ns_addc_u32 s21, s5, 0\ns_and_b32 s21, s21, 0xffff\ns_mov_b32 s22, 262144\ns_mov_b32 s23, 0x20000")
    def lds(slot):
        r = [(f"s_add_u32 m0, s43, {XS[slot]}" if i == 0 else "", f"buffer_load_dwordx4 v{VX+i}, s[20:23], s38 offen offset:{i*1024} lds") for i in range(4)]
        return r + [(f"s_add_u32 m0, s36, {WS[slot]+(i&4)*1024}" if i in (0, 4) else "", f"buffer_load_dwordx4 v{VD+i}, s[24:27], s37 offen offset:{(i&3)*1024} lds") for i in range(7)]
    issue(a, lds(0)[:4])
    a("s_add_u32 s24, s6, s41\ns_addc_u32 s25, s7, 0\ns_and_b32 s25, s25, 0xffff\ns_sub_u32 s26, 7340032, s41\ns_mov_b32 s27, 0x20000")
    for i in range(7):
        a(f"v_add_u32 v2, {64*i}, v0\nv_mul_u32_u24 v7, s15, v2\nv_lshrrev_b32 v7, 18, v7\nv_mul_u32_u24 v4, 28, v7\nv_sub_u32 v4, v2, v4")
        a(f"v_lshrrev_b32 v5, 2, v7\nv_and_b32 v5, 2, v5\nv_xor_b32 v4, v4, v5\nv_mul_u32_u24 v7, 7168, v7\nv_lshl_add_u32 v7, v4, 4, v7")
        a(f"v_add_u32 v7, s40, v7\nv_subrev_u32 v{VD+i}, {(i&3)*1024}, v7")
        issue(a, lds(0)[4+i:5+i])
        if i == O("pfat", 2):
            a("s_lshl_b32 s42, s2, 2\ns_add_u32 s42, s42, s3\ns_lshl_b32 s16, s42, 12\ns_add_u32 s28, s4, s16\ns_addc_u32 s29, s5, 0")
            a(f"s_mul_i32 s16, s42, 896\ns_add_u32 s16, s16, {PF0//2*917504}\ns_add_u32 s30, s6, s16\ns_addc_u32 s31, s7, 0")
            for x in pf(O("q0", 11)): a(x)
    nx = "s_add_u32 s37, s37, 458752\ns_add_u32 s38, s38, 128"
    if WN > 1: nx = "\n".join(adv(60, 61, 62, WN)) + "\ns_mul_i32 s37, s16, 458752\ns_lshl_b32 s38, s16, 7"
    srd(a, 48, 4, 5, 4194304); srd(a, 56, 6, 7, 7340032)
    VTS = dict((int(z.split(":")[0]), tuple(map(int, z.split(":")[1:]))) for z in opts.get("vt", "").split(",") if z)
    def vt(k):
        if k not in VTS: return 0
        s0, s1 = VTS[k]; n1 = s1 - s0; nl = (n1*3584 + 1023)//1024
        a(f"v_min_u32 v2, {2*n1-1}, v0\nv_and_b32 v4, 1, v2\nv_lshrrev_b32 v2, 1, v2\nv_lshlrev_b32 v2, 7, v2\nv_lshl_add_u32 v2, v4, 11, v2\ns_lshl_b32 s16, s42, 12\nbuffer_load_dword v8, v2, s[48:51], s16 offen offset:{128*s0}")
        a(f"v_min_u32 v2, {nl-1}, v0\nv_lshlrev_b32 v2, 7, v2\ns_mul_i32 s16, s42, {n1*448}\ns_and_b32 s16, s16, 0xffffff80\ns_add_u32 s16, s16, {458752*s0}\nbuffer_load_dword v9, v2, s[56:59], s16 offen")
        return 2
    NT = vt(0)
    a(nx); issue(a, lds(1)); a(nx)
    n1_ = vt(1); NT += n1_
    srd(a, 52, 10, 11, 7340032)
    a("v_and_b32 v4, 15, v0\nv_lshlrev_b32 v5, 1, v3\nv_xor_b32 v4, v4, v5\ns_and_b32 s16, s3, 1\ns_lshl_b32 s16, s16, 15\ns_lshl_b32 s17, s19, 8\ns_add_u32 s16, s16, s17\nv_lshlrev_b32 v2, 11, v3\nv_add_u32 v2, s16, v2")
    a(f"v_lshl_add_u32 v{VD2}, v4, 4, v2\nv_xor_b32 v4, 8, v4\nv_lshl_add_u32 v{VD2+1}, v4, 4, v2\nv_add_u32 v{VD2+2}, {2*7168}, v{VD2}\nv_add_u32 v{VD2+3}, {3*7168}, v{VD2+1}\nv_add_u32 v{VD2+1}, 7168, v{VD2+1}")
    a(f"s_waitcnt vmcnt({11+NT})\ns_barrier")
    a("s_lshl_b32 s16, s12, 2\ns_add_u32 s16, s16, s3\ns_lshr_b32 s17, s16, 1\ns_lshl_b32 s17, s17, 11\ns_and_b32 s16, s16, 1\ns_lshl_b32 s16, s16, 7\ns_add_u32 s16, s16, s17\ns_lshl_b32 s17, s19, 8\ns_add_u32 s16, s16, s17\ns_add_u32 s32, s10, s16\ns_addc_u32 s33, s11, 0")
    a(f"s_mul_i32 s94, s13, 7\ns_mul_i32 s95, s14, 56\n" + ("s_add_u32 s63, s95, 56\ns_add_u32 s95, s94, 7\n" if O("r2", 0) else "") + (f"s_add_u32 s63, s95, 56\ns_and_b32 s17, s19, {O('r3', 0)}\ns_mul_i32 s17, s17, 7\ns_add_u32 s95, s95, s17\n" if O("r3", 0) else "") + f"s_lshr_b32 s97, s3, 1\ns_add_u32 s96, s95, s97\ns_sub_u32 s96, s96, 1\ns_add_u32 s43, s43, 0\ns_lshl_b32 s86, s3, 12\ns_add_u32 s86, s86, {LB2}")
    def mix(l, q):
        p = pf(q); k = 0
        for n, it in enumerate(l):
            issue(a, [it])
            while k < len(p) and k < (n+1)*len(p)//len(l): a(p[k]); k += 1
    def w2(st):
        if st < 3: pre = f"s_add_u32 s17, s94, s97\ns_add_u32 s17, s17, {2*st}\ns_lshl_b32 s98, s17, 16"
        elif st == 3: pre = kmap(96, 98, 94, 16) + f"\ns_add_u32 s17, s94, 6\ns_lshl_b32 s17, s17, 16\ns_cmp_eq_u32 s97, 0\ns_cselect_b32 s98, s17, s98\ns_add_u32 s96, s96, 2"
        else: pre = kmap(96, 98, 94, 16) + "\ns_add_u32 s96, s96, 2"
        return [(pre + f"\ns_add_u32 m0, s86, {(st%4)*16384}" if i == 0 else "", f"buffer_load_dwordx4 v{VD2+i}, s[52:55], s98 offen offset:{i*1024} lds") for i in range(4)]
    QS = O("qs", 5)
    mix(lds(2), O("q1", 6)); a(nx)
    TL = [int(z) for z in opts.get("tl", "15").split(",")]; TC = -(-56 // len(TL))
    a(f"s_mul_i32 s16, s42, 7168\nv_min_u32 v10, {TC-1}, v0\nv_lshlrev_b32 v10, 7, v10\nv_add_u32 v10, s16, v10")
    TW = O("tw", 15); prev = n1_; cur = vt(2)
    for s in range(15):
        a(f"s_waitcnt vmcnt({(11 if s < 14 else 4) + prev + cur})\ns_barrier")
        prev = cur; cur = 0
        if s < 13:
            mix(lds(s % 3), QS); a(nx); cur = vt(s+3)
            if s+3 in TL: a(f"buffer_load_dword v11, v10, s[52:55], 0 offen\nv_add_u32 v10, {TC*128}, v10"); cur += 1
        elif s == 13: mix(w2(0), QS)
        else: mix(sum((w2(z) for z in range(1, 4-O("wd", 0))), []), O("q2", 20))
    a(f"s_waitcnt vmcnt({12-4*O('wd', 0)})\ns_barrier")
    for z in range(4-O("wd", 0), 4): issue(a, w2(z))
    for s in range(27):
        a(f"s_waitcnt vmcnt({4*min(2, 26-s)})\ns_barrier")
        if s < 24: mix(w2(s+4), O("q3", 3))
    assert not PFL, len(PFL)
    a("s_waitcnt lgkmcnt(0)\ns_endpgm")
PF0 = O("pf0", 16)
PFL = []
for p in range(PF0//2, 8):
    PFL += [f"s_load_dword s34, s[28:29], {r*2048 + 2*p*128 + e*64}" for e in range(4) for r in range(2)]
    PFL += [f"s_load_dword s34, s[30:31], {i*64}" for i in range(13)] + ["s_load_dword s34, s[30:31], 832\ns_add_u32 s30, s30, 917504\ns_addc_u32 s31, s31, 0"]
L2_ = "s_add_u32 s35, s35, 64\ns_load_dword s34, s[32:33], s35"
for q in range(O("pw2", 0)):
    PFL += [f"s_add_u32 s17, s94, {q}\ns_lshl_b32 s35, s17, 16\ns_load_dword s34, s[32:33], s35" if q < 7 else kmap(95, 35, 94, 16) + "\ns_load_dword s34, s[32:33], s35\ns_add_u32 s95, s95, 1", L2_]
def pf(n):
    r = PFL[:n]; del PFL[:n]; return r

def fused():
    a = A()
    ACC = 16; WB = [0, 56]; XB = [112, 120]; VT = 10; VXR = 14
    stamp_rt(a, 0); stamp(a, 1)
    a("s_cmp_ge_u32 s2, 256\ns_cbranch_scc1 L1_end")
    a("s_load_dwordx4 s[4:7], s[0:1], 0\ns_load_dwordx4 s[8:11], s[0:1], 16\ns_load_dwordx4 s[88:91], s[0:1], 32\ns_load_dwordx4 s[44:47], s[0:1], 48")
    a("v_lshrrev_b32 v1, 6, v0\nv_and_b32 v0, 63, v0\ns_lshr_b32 s13, s2, 3\nv_readfirstlane_b32 s3, v1\nv_lshrrev_b32 v3, 4, v0")
    a("s_and_b32 s18, s13, 3\ns_lshr_b32 s19, s13, 2")
    a("s_and_b32 s12, s2, 3\ns_lshl_b32 s12, s12, 2\ns_add_u32 s12, s12, s18")
    a("s_and_b32 s13, s2, 4\ns_lshr_b32 s14, s13, 2\ns_lshl_b32 s13, s13, 1\ns_add_u32 s13, s13, s19")
    a("s_cmp_lt_u32 s3, 4\ns_cbranch_scc1 L_main")
    producer(a)
    a.label("L_main")
    if O("cp", 0):
        CPN = O("cp", 0)
        a(f"s_cmp_lg_u32 s3, 0\ns_cbranch_scc1 L_ncp\ns_getpc_b64 s[20:21]")
        a.label("L_gpc")
        a(f"s_lshr_b32 s16, s2, 3\ns_and_b32 s16, s16, {CPN-1}\ns_mul_i32 s16, s16, {176//CPN}\nv_min_u32 v4, {176//CPN-1}, v0\nv_add_u32 v4, s16, v4\nv_lshlrev_b32 v4, 7, v4\nv_min_u32 v4, L1_end-{NAME}_kernel, v4")
        a(f"s_sub_u32 s20, s20, L_gpc-{NAME}_kernel\ns_subb_u32 s21, s21, 0\nv_mov_b32 v5, s21\nv_add_co_u32 v4, vcc, s20, v4\nv_addc_co_u32 v5, vcc, 0, v5, vcc\nglobal_load_dword v8, v[4:5], off")
        a.label("L_ncp")
    a(f"s_lshl_b32 s16, s3, 9\ns_add_u32 m0, s16, {LBI}\nv_lshlrev_b32 v2, 2, v0\nv_lshlrev_b32 v6, 3, v3\nv_add_u32 v6, m0, v6\ns_mul_i32 s16, s13, 448")
    a("s_waitcnt lgkmcnt(0)\ns_add_u32 s8, s8, s16\ns_addc_u32 s9, s9, 0")
    srd(a, 28, 8, 9, 448)
    a("buffer_load_dword v2, s[28:31], 0 offen lds\nbuffer_load_dword v2, s[28:31], 0 offen offset:256 lds")
    srd(a, 48, 46, 47, 0x4000000); srd(a, 56, 44, 45, 256)
    a("v_mov_b32 v7, 0\ns_or_b32 s16, s2, s3\ns_cmp_eq_u32 s16, 0\ns_cbranch_scc0 L_nn0\ns_load_dwordx2 s[92:93], s[46:47], 0\ns_waitcnt lgkmcnt(0)\ns_add_u32 s92, s92, 1\ns_or_b32 s93, s93, 1\nv_mov_b32 v4, s92\nv_mov_b32 v5, s93")
    a("s_waitcnt vmcnt(0)\nbuffer_store_dwordx2 v[4:5], v7, s[56:59], 0 offen sc1\nbuffer_store_dwordx2 v[4:5], v7, s[48:51], 0 offen\ns_branch L_nn1")
    a.label("L_nn0"); a("s_waitcnt vmcnt(0)"); a.label("L_nn1")
    for t in range(14): a(f"ds_read_b64 v[{ACC+t*8+6}:{ACC+t*8+7}], v6 offset:{32*t}")
    a("s_lshl_b32 s16, s19, 8\ns_lshl_b32 s17, s14, 7\ns_add_u32 s16, s16, s17\ns_add_u32 s88, s88, s16\ns_addc_u32 s89, s89, 0")
    srd(a, 28, 88, 89, 128)
    a("s_lshl_b32 s17, s12, 18\ns_add_u32 s16, s16, s17\ns_add_u32 s90, s90, s16\ns_addc_u32 s91, s91, 0\ns_sub_u32 s17, 4194304, s16")
    srd(a, 32, 90, 91, "s17")
    a(f"s_mul_i32 s94, s13, 7\ns_mul_i32 s95, s14, 56\n" + ("s_add_u32 s63, s95, 56\ns_add_u32 s95, s94, 7\n" if O("r2", 0) else "") + (f"s_add_u32 s63, s95, 56\ns_and_b32 s17, s19, {O('r3', 0)}\ns_mul_i32 s17, s17, 7\ns_add_u32 s95, s95, s17\n" if O("r3", 0) else "") + f"s_mul_i32 s98, s12, 112*8192\ns_add_u32 s98, s98, {HOFF}\ns_lshl_b32 s99, s94, 13\ns_add_u32 s99, s99, s98")
    a(f"s_and_b32 s16, s2, 7\ns_lshl_b32 s16, s16, 2\ns_add_u32 s16, s16, s18\ns_lshl_b32 s16, s16, 2\ns_add_u32 s16, s16, s3\ns_lshl_b32 s16, s16, 7\ns_add_u32 s87, s16, {FLAG}\ns_lshl_b32 s16, s19, 3\ns_add_u32 s86, s87, s16")
    a("v_lshrrev_b32 v2, 2, v0\nv_and_b32 v2, 3, v2\nv_lshl_add_u32 v2, v3, 3, v2\nv_mul_u32_u24 v2, 448, v2\nv_and_b32 v8, 3, v0\nv_lshl_add_u32 v2, v8, 3, v2")
    a(f"v_and_b32 v8, 1, v3\nv_lshlrev_b32 v8, 5, v8\nv_add_u32 v{VT}, v2, v8\nv_xor_b32 v8, 32, v8\nv_add_u32 v{VT+1}, v2, v8\nv_add_u32 v{VT+2}, {WS[2]}, v{VT}\nv_add_u32 v{VT+3}, {WS[2]}, v{VT+1}")
    a(f"s_lshl_b32 s16, s3, 12\ns_add_u32 s16, s16, {XS[0]}\nv_and_b32 v2, 15, v0\nv_lshrrev_b32 v8, 1, v2\nv_xor_b32 v8, v8, v3\nv_lshlrev_b32 v2, 7, v2\nv_lshl_add_u32 v2, v8, 4, v2\nv_add_u32 v{VXR}, s16, v2\nv_xor_b32 v{VXR+1}, 64, v{VXR}")
    a("s_lshl_b32 s16, s3, 11\nv_lshlrev_b32 v1, 4, v0\nv_add_u32 v1, s16, v1\ns_waitcnt lgkmcnt(0)")
    TP = O("tp", 0)
    if TP:
        a("s_cmp_lg_u32 s3, 1\ns_cbranch_scc1 L_ntp")
        if TP & 1: a("buffer_load_dword v9, v7, s[48:51], s99 offen")
        if TP & 2: a(f"s_xor_b32 s16, s2, 4\ns_lshl_b32 s16, s16, 15\ns_add_u32 s16, s16, {XCH}\nbuffer_load_dword v9, v7, s[48:51], s16 offen")
        if TP & 4: a("s_mov_b32 s16, 0x20c0000\nbuffer_load_dword v9, v7, s[48:51], s16 offen")
        if TP & 8: a("buffer_load_dword v9, v7, s[32:35], 0 offen")
        if TP & 16:
            srd(a, 52, 10, 11, 7340032)
            a("s_mul_i32 s16, s14, 3670016\nv_and_b32 v2, 7, v0\nv_lshlrev_b32 v2, 19, v2\nbuffer_load_dword v9, v2, s[52:55], s16 offen")
        a.label("L_ntp")
    for t in range(14):
        d = ACC + t*8
        a(f"v_lshlrev_b32 v{d}, 16, v{d+6}\nv_and_b32 v{d+1}, 0xffff0000, v{d+6}\nv_lshlrev_b32 v{d+2}, 16, v{d+7}\nv_and_b32 v{d+3}, 0xffff0000, v{d+7}\nv_pk_mov_b32 v[{d+4}:{d+5}], v[{d}:{d+1}], v[{d}:{d+1}] op_sel:[0,1]\nv_pk_mov_b32 v[{d+6}:{d+7}], v[{d+2}:{d+3}], v[{d+2}:{d+3}] op_sel:[0,1]")
    def rds(slot, j):
        r = [f"ds_read_b128 a[{XB[j]+mt*4}:{XB[j]+mt*4+3}], v{VXR+j} offset:{slot*16384+mt*2048}" for mt in range(2)]
        for t in range(14):
            for i in range(2):
                d = WB[j] + t*4 + i*2
                r.append(f"ds_read_b64_tr_b16 a[{d}:{d+1}], v{VT+(slot>>1)*2+(t&1)} offset:{(slot&1)*28672 + j*32*448 + i*4*448 + (t & ~1)*32}")
        return r
    pt(a, "w0"); a("s_barrier"); pt(a, "b0")
    for x in rds(0, 0): a(x)
    a("s_mov_b32 s39, 0")
    pt(a, "l1")
    def mf(j):
        return [f"v_mfma_f32_16x16x32_bf16 v[{ACC+(t*2+mt)*4}:{ACC+(t*2+mt)*4+3}], a[{WB[j]+t*4}:{WB[j]+t*4+3}], a[{XB[j]+mt*4}:{XB[j]+mt*4+3}], v[{ACC+(t*2+mt)*4}:{ACC+(t*2+mt)*4+3}]" for t in range(14) for mt in range(2)]
    RN, RD = O("rn", 2), O("rd", 3)
    def stage(s, last=False, extra=None):
        f = {-1: ["s_waitcnt lgkmcnt(0)"]}
        spread(f, rds(s, 1), 0, RN, RD)
        if last: f.setdefault(24, []).append("buffer_load_dwordx2 v[4:5], v7, s[56:59], 0 offen sc1\nv_lshlrev_b32 v2, 2, v0\nbuffer_load_dword v2, s[28:31], 0 offen lds")
        interleave(a, mf(0), f)
        f = {-1: ["s_waitcnt lgkmcnt(0)" + ("" if last else "\ns_barrier")]}
        if not last: spread(f, rds((s+1) % 3, 0), 0, RN, RD)
        if extra: f.setdefault(26, []).append(extra)
        interleave(a, mf(1), f)
    a.label("L1_loop")
    for s in range(3): stage(s, extra=("s_add_u32 s39, s39, 1\ns_cmp_lt_u32 s39, 5" if s == 2 else None))
    a("s_cbranch_scc1 L1_loop")
    IE = O("ie", 0)
    if not IE: stage(0, last=True)
    pt(a, "e1")
    WB2 = [0, 32]; VT2 = 88; B2 = 104; VH = 1
    HF = FL("hf", "sc1"); HS = FL("hs", "sc1")
    own = lambda u, mt: ACC + 16*u + 4*mt
    acc2 = lambda t, mt: (f"v[{ACC+16*t+8+4*mt}:{ACC+16*t+8+4*mt+3}]" if t < 4 else f"a[{96+(t-4)*8+4*mt}:{96+(t-4)*8+4*mt+3}]")
    hreg = lambda s, j, mt: (f"v[{own(2*s+j, mt)}:{own(2*s+j, mt)+3}]" if s < 2 else f"a[{64+(s-2)*16+(j*2+mt)*4}:{64+(s-2)*16+(j*2+mt)*4+3}]")
    def hl(s, j):
        km = kmap(95, 96, 94, 13, 98).split("\n")
        return [("", "\n".join(km[:3])), ("", "\n".join(km[3:]) + "\ns_add_u32 s95, s95, 1")] + [("", f"buffer_load_dwordx4 {hreg(s, j, mt)}, v{VH}, s[48:51], s96 offen offset:{mt*1024} {HF}") for mt in range(2)]
    def rds2(slot, j): return [f"ds_read_b64_tr_b16 a[{WB2[j]+t*4+i*2}:{WB2[j]+t*4+i*2+1}], v{VT2+t} offset:{slot*16384+j*8192+i*4096}" for t in range(8) for i in range(2)]
    def epi(u):
        r = []
        for mt in range(2):
            o = own(u, mt)
            for h in range(2):
                d = o + 8*h
                r.append("\n".join(f"v_max_f32 v{d+e}, 0, v{d+e}" for e in range(4)))
                r.append(f"v_pk_mul_f32 v[{d}:{d+1}], v[{d}:{d+1}], v[{d}:{d+1}]\nv_pk_mul_f32 v[{d+2}:{d+3}], v[{d+2}:{d+3}], v[{d+2}:{d+3}]\nv_cvt_pk_bf16_f32 v{o+2*h}, v{d}, v{d+1}\nv_cvt_pk_bf16_f32 v{o+2*h+1}, v{d+2}, v{d+3}")
            r[-1] += f"\nbuffer_store_dwordx4 v[{o}:{o+3}], v{VH}, s[48:51], s99 offen offset:{mt*1024} {HS}" + ("\ns_add_u32 s99, s99, 8192" if mt else "")
        return r
    if IE:
        G = [(0,0),(0,1),(0,2),(1,0),(0,3),(1,1),(0,4),(1,2),(0,5),(1,3),(0,6),(1,4),(1,5),(1,6)]
        f = {-1: ["s_waitcnt lgkmcnt(0)"]}; spread(f, rds(0, 1), 0, 1, 1)
        f[8].append("buffer_load_dwordx2 v[4:5], v7, s[56:59], 0 offen sc1\nv_lshlrev_b32 v2, 2, v0\nbuffer_load_dword v2, s[28:31], 0 offen lds")
        for n, (j, u) in enumerate(G):
            if j and u < 4: spread(f, epi(u), 4*n + 7, 1, 1)
        for n, (j, u) in enumerate(G):
            if j: f.setdefault(4*n - 1, []).append(f"s_waitcnt lgkmcnt({min(30, 4*n) - 6 - 4*u})")
        assert max(f) < 56
        interleave(a, [x for j, u in G for x in mf(j)[4*u:4*u+4]], f)
    for u in range(4 if IE else 0, 7):
        for x in epi(u): a(x)
        if u == 4:
            a(f"v_lshrrev_b32 v2, 2, v0\nv_and_b32 v8, 7, v2\ns_lshl_b32 s16, s14, 2\nv_xor_b32 v8, s16, v8\nv_lshlrev_b32 v2, 8, v2\nv_and_b32 v9, 3, v0\nv_lshl_add_u32 v2, v9, 3, v2\nv_add_u32 v2, {LB2}, v2")
            for t in range(8): a(f"v_xor_b32 v9, {t}, v8\nv_lshl_add_u32 v{VT2+t}, v9, 5, v2")
        if u == 5:
            a("s_waitcnt vmcnt(12)\ns_barrier")
            for t in range(4): a(f"ds_read_b64 v[{B2+2*t}:{B2+2*t+1}], v6 offset:{32*t}")
            for x in rds2(0, 0): a(x)
    a("v_and_b32 v11, 7, v0\nv_lshlrev_b32 v11, 3, v11\ns_waitcnt lgkmcnt(0)")
    for t in range(4):
        for mt in range(2):
            d = ACC+16*t+8+4*mt
            a(f"v_lshlrev_b32 v{d}, 16, v{B2+2*t}\nv_and_b32 v{d+1}, 0xffff0000, v{B2+2*t}\nv_lshlrev_b32 v{d+2}, 16, v{B2+2*t+1}\nv_and_b32 v{d+3}, 0xffff0000, v{B2+2*t+1}")
    a("v_readfirstlane_b32 s93, v5\ns_mov_b32 s39, 0\ns_cmp_lg_u32 s93, 0\ns_cbranch_scc1 L_nok")
    a.label("L_nsp")
    a("s_sleep 2\nbuffer_load_dwordx2 v[4:5], v7, s[56:59], 0 offen sc1\ns_add_u32 s39, s39, 1\ns_waitcnt vmcnt(0)\nv_readfirstlane_b32 s93, v5\ns_lshr_b32 s16, s39, 19\ns_or_b32 s16, s16, s93\ns_cmp_eq_u32 s16, 0\ns_cbranch_scc1 L_nsp")
    a.label("L_nok")
    pt(a, "g2")
    def mf2(s, j, ow, order, first):
        hr = lambda mt: (f"v[{own(ow, mt)}:{own(ow, mt)+3}]" if ow is not None else hreg(s, j, mt))
        return [f"v_mfma_f32_16x16x32_bf16 {acc2(t, mt)}, a[{WB2[j]+t*4}:{WB2[j]+t*4+3}], {hr(mt)}, {'0' if first and t >= 4 else acc2(t, mt)}" for t in order for mt in range(2)]
    def ph(s, j, pre, l, ow=None, last=False, extra=None, first=False):
        f = {-1: [pre]}
        if not last: spread(f, rds2(s, 1) if j == 0 else rds2((s+1) % 4, 0), 0, O("rn2", 2), O("rd2", 3))
        pos = [11, 12, 13, 15] if len(l) <= 4 else [2, 3, 4, 7, 11, 12, 13, 15]
        for p, (_, x) in zip(pos, l): f.setdefault(p, []).append(x)
        if extra: f.setdefault(14, []).append(extra)
        interleave(a, mf2(s, j, ow, [4,5,6,7,0,1,2,3] if last else range(8), first), f)
    L0 = "s_waitcnt lgkmcnt(0)"; LB = L0 + "\ns_barrier"
    poll = "buffer_load_dwordx2 v[8:9], v11, s[48:51], s87 offen sc1"
    ph(0, 0, L0, [], 0, first=True); ph(0, 1, LB, [], 1)
    ph(1, 0, "s_waitcnt vmcnt(0) lgkmcnt(0)\nbuffer_store_dwordx2 v[4:5], v7, s[48:51], s86 offen sc1", [], 2); ph(1, 1, LB, [], 3)
    pt(a, "p0")
    ph(2, 0, L0 + "\n" + poll, [], 4)
    a(f"v_readfirstlane_b32 s20, v4\ns_lshl_b32 s16, s2, 2\ns_add_u32 s16, s16, s3\ns_lshl_b32 s16, s16, 13\ns_add_u32 s26, s16, {XCH}\ns_add_u32 s27, s26, 4096\ns_xor_b32 s24, s26, {16<<13}\ns_add_u32 s25, s24, 4096\nv_lshlrev_b32 v2, 4, v0\ns_lshr_b32 s16, s16, 6\ns_add_u32 s19, s16, {XFL}\ns_xor_b32 s18, s19, {16<<7}")
    a("s_mul_i32 s20, s20, 0x01010101\ns_lshr_b32 s23, s20, 24\ns_bfe_u32 s22, s20, 0x80010\ns_bfe_u32 s21, s20, 0x80008\ns_and_b32 s20, s20, 0xff\nv_mov_b32 v14, 0xffffff00")
    a(("v_and_b32 v12, 7, v0\nv_lshlrev_b32 v12, 11, v12\nv_and_b32 v13, 8, v0\nv_lshl_add_u32 v12, v13, 3, v12\ns_mov_b32 s21, 16384\n" if O("fl", 0) else "v_and_b32 v12, 15, v0\nv_lshlrev_b32 v12, 11, v12\n") + "s_lshl_b32 s15, s3, 16\nv_add_u32 v12, s15, v12\nv_and_b32 v13, 1, v3\nv_lshl_add_u32 v12, v13, 5, v12\nv_lshrrev_b32 v13, 1, v3\nv_lshl_add_u32 v12, v13, 4, v12\nv_add_u32 v13, 32768, v12")
    a("s_mov_b32 s39, 0\ns_branch L_pc")
    a.label("L_pl")
    a("s_sleep 1\n" + poll + "\ns_add_u32 s39, s39, 1\ns_cmp_gt_u32 s39, 0x80000\ns_cbranch_scc1 L_pd")
    a.label("L_pc")
    a("s_waitcnt vmcnt(0)\nv_cmp_ne_u64 vcc, v[8:9], v[4:5]\ns_cbranch_vccnz L_pl")
    a.label("L_pd")
    pt(a, "pd")
    issue(a, hl(3, 1)+hl(0, 0)+hl(0, 1))
    ph(2, 1, LB, hl(1, 0)+hl(1, 1), 5)
    ph(3, 0, L0, hl(2, 0)+hl(2, 1), 6)
    ph(3, 1, "s_waitcnt vmcnt(12) lgkmcnt(0)\ns_barrier", hl(3, 0))
    a("s_mov_b32 s39, 0")
    pt(a, "l2")
    a.label("L2_loop")
    for s in range(4):
        ph(s, 0, "s_waitcnt vmcnt(12) lgkmcnt(0)", hl((s-1) % 4, 1))
        ph(s, 1, "s_waitcnt vmcnt(12) lgkmcnt(0)\ns_barrier", hl(s, 0), extra=("s_add_u32 s39, s39, 1\ns_cmp_lt_u32 s39, 5" if s == 3 else None))
    a("s_cbranch_scc1 L2_loop")
    XT = O("xt", 2); KX = 56 - 2*XT; R = 96
    P = [[(k, t) for t in range(8)] for k in range(48, KX)]
    P += [[(k+e, t) for e in range(2) for t in range(4, 8)] for k in range(KX, 56, 2)]
    NY = len(P)
    P += [[(k+e, t) for e in range(2) for t in range(4)] for k in range(KX, 56, 2)]
    snd = []
    for q in range(8):
        snd += ["\n".join(f"v_accvgpr_read_b32 v{R+4*q+e}, a{96+4*q+e}" for e in range(4)),
                "\n".join(f"v_and_or_b32 v{R+4*q+e}, v{R+4*q+e}, v14, s{20+e}" for e in range(4)) + f"\nbuffer_store_dwordx4 v[{R+4*q}:{R+4*q+3}], v2, s[48:51], s{24+(q>>2)} offen offset:{(q&3)*1024} sc1"]
    QO = [0, 2, 4, 6, 1, 3, 5, 7]; XB16 = O("xb", 0)
    if XB16:
        assert O("fw", 0) == 0 and O("fm", 1)
        snd = []; QO = [0, 1, 2, 3]
        for qp in range(4):
            for h in range(2):
                q = (2*(qp & 1)+h)*2 + (qp >> 1); T = 80 + 4*h; o = R + 4*qp + 2*h
                snd += ["\n".join(f"v_accvgpr_read_b32 v{T+e}, a{96+4*q+e}" for e in range(4)), f"v_cvt_pk_bf16_f32 v{o}, v{T}, v{T+1}\nv_cvt_pk_bf16_f32 v{o+1}, v{T+2}, v{T+3}"]
            snd[-1] += f"\nbuffer_store_dwordx4 v[{R+4*qp}:{R+4*qp+3}], v2, s[48:51], s24 offen offset:{qp*1024} sc1"
    rcv = [f"buffer_load_dwordx4 v[{R+4*q}:{R+4*q+3}], v2, s[48:51], s{26+(q>>2)} offen offset:{(q&3)*1024} sc1" for q in QO]
    yf = {}; spread(yf, snd, 1, O("sn", 1), O("sd", 1)); RP = O("rp", 16)
    assert max(yf) < 16*XT - RP or RP == 0
    FM = O("fm", 1); xflag = f"s_waitcnt vmcnt({O('fw', 0)})\nbuffer_store_dwordx2 v[4:5], v7, s[48:51], s18 offen sc1"
    if FM: yf.setdefault(16*XT - 1 - RP, []).append(xflag)
    for n, x in enumerate([] if FM else rcv): yf.setdefault(min(16*XT - 1, 16*XT - RP + n*O("rs", 1)), []).append(x)
    bar = 0
    for n, p in enumerate(P):
        km = max(k for k, t in p); pre = (f"s_waitcnt vmcnt({min(12, 2*(55-km))}) lgkmcnt(0)" if n < NY else L0)
        f = {}
        if n < 7:
            sn = (max(k for k, t in P[n+1]) >> 1) % 4
            if sn > bar: assert sn == bar + 1; bar = sn; pre += "\ns_barrier"
            spread(f, [f"ds_read_b64_tr_b16 a[{WB2[1-(n&1)]+m*4+i*2}:{WB2[1-(n&1)]+m*4+i*2+1}], v{VT2+t} offset:{(k-48)*8192+i*4096}" for m, (k, t) in enumerate(P[n+1]) for i in range(2)], 0, O("rn2", 2), O("rd2", 3))
        f[-1] = [pre]
        if n == 0:
            for pp, (_, x) in zip([1, 2, 3, 5], hl(3, 1)): f.setdefault(pp, []).append(x)
        if n == NY: pt(a, "xs")
        if n >= NY:
            for i in range(16): f.setdefault(i, []).extend(yf.get(16*(n-NY)+i, []))
        interleave(a, [f"v_mfma_f32_16x16x32_bf16 {acc2(t, mt)}, a[{WB2[n&1]+m*4}:{WB2[n&1]+m*4+3}], {hreg((k>>1)%4, k&1, mt)}, {acc2(t, mt)}" for m, (k, t) in enumerate(p) for mt in range(2)], f)
    assert bar == 3
    pt(a, "e2")
    a("s_mov_b32 s39, 0" + ("" if FM else "\ns_branch L_xc"))
    a.label("L_xl")
    if FM: a(f"s_sleep {O('xsl', 1)}\nbuffer_load_dwordx2 v[8:9], v7, s[48:51], s19 offen sc1\ns_add_u32 s39, s39, 1\ns_cmp_gt_u32 s39, 0x80000\ns_cbranch_scc1 L_xd\ns_waitcnt vmcnt(0)\nv_cmp_ne_u64 vcc, v[8:9], v[4:5]\ns_cbranch_vccnz L_xl"); pt(a, "xp")
    else: a(f"s_sleep {O('xsl', 1)}\nbuffer_load_dword v8, v7, s[48:51], s27 offen offset:4092 sc1\ns_add_u32 s39, s39, 1\ns_cmp_gt_u32 s39, 0x80000\ns_cbranch_scc1 L_xd\ns_waitcnt vmcnt(0)\nv_and_b32 v8, 0xff, v8\nv_cmp_ne_u32 vcc, s23, v8\ns_cbranch_vccnz L_xl")
    for x in rcv: a(x)
    a.label("L_xc")
    for n, q in enumerate([] if XB16 else QO):
        r = R + 4*q
        a(f"s_waitcnt vmcnt({7-n})\n" + "\n".join(f"v_xor_b32 v{r+e}, s{20+e}, v{r+e}" for e in range(4)))
        a((f"v_or_b32 v15, v{r}, v{r+1}" if n == 0 else f"v_or3_b32 v15, v15, v{r}, v{r+1}") + f"\nv_or3_b32 v15, v15, v{r+2}, v{r+3}")
    if not XB16: a("v_and_b32 v15, 0xff, v15\nv_cmp_ne_u32 vcc, 0, v15\ns_cbranch_vccnz L_xl")
    a.label("L_xd")
    pt(a, "xd")
    for qp in range(4):
        mt, tp = qp >> 1, qp & 1
        o = own(qp, 0)
        for h in range(2):
            r = R + 4*((2*tp+h)*2+mt); d = own(2*tp+h, mt) + 8
            if XB16:
                r = 80 + 4*h; g = R + 4*qp + 2*h
                a(("s_waitcnt vmcnt(0)\n" if h == 0 and qp == 0 else "") + f"v_lshlrev_b32 v{r}, 16, v{g}\nv_and_b32 v{r+1}, 0xffff0000, v{g}\nv_lshlrev_b32 v{r+2}, 16, v{g+1}\nv_and_b32 v{r+3}, 0xffff0000, v{g+1}")
            for e in (0, 2): a(f"v_pk_add_f32 v[{d+e}:{d+e+1}], v[{d+e}:{d+e+1}], v[{r+e}:{r+e+1}]")
            a(f"v_cvt_pk_bf16_f32 v{o+2*h}, v{d}, v{d+1}\nv_cvt_pk_bf16_f32 v{o+2*h+1}, v{d+2}, v{d+3}")
        a(f"s_nop 1\nv_permlane16_swap_b32 v{o}, v{o+2}\nv_permlane16_swap_b32 v{o+1}, v{o+3}")
        if not O("fl", 0): a(f"buffer_store_dwordx4 v[{o}:{o+3}], v{12+mt}, s[32:35], 0 offen offset:{tp*64} {FL('of')}")
        elif tp:
            X = own(qp-1, 0); T = X + 4
            for e in range(4): a(f"v_mov_b32 v{T+e}, v{X+e}")
            for e in range(4): a(f"v_mov_b32_dpp v{X+e}, v{o+e} row_ror:8 row_mask:0xf bank_mask:0xc")
            a(f"buffer_store_dwordx4 v[{X}:{X+3}], v{12+mt}, s[32:35], 0 offen {FL('of')}")
            for e in range(4): a(f"v_mov_b32_dpp v{o+e}, v{T+e} row_ror:8 row_mask:0xf bank_mask:0x3")
            a(f"buffer_store_dwordx4 v[{o}:{o+3}], v{12+mt}, s[32:35], s21 offen {FL('of')}")
    if STAMP: a("s_waitcnt vmcnt(0)")
    stamp(a, 6); stamp_rt(a, 7)
    stamp_out(a, 8, 0x8000000)
    a.label("L1_end")
    return a.text()

def kern(name, body, vgpr, accum):
    return f""".globl {name}
.p2align 8
.type {name},@function
{name}:
{body}
    s_endpgm
""", f""".amdhsa_kernel {name}
  .amdhsa_next_free_vgpr {vgpr}
  .amdhsa_next_free_sgpr 102
  .amdhsa_accum_offset {accum}
  .amdhsa_group_segment_fixed_size 0
  .amdhsa_kernarg_size 64
  .amdhsa_user_sgpr_count 2
  .amdhsa_user_sgpr_kernarg_segment_ptr 1
  .amdhsa_system_sgpr_workgroup_id_x 1
.end_amdhsa_kernel
"""
k1, d1 = kern(NAME + "_kernel", fused(), 256, 128)
hdr = "".join(l for l in open("cdna_kernels/" + NAME + ".s.ref").readlines()[:9])
out = hdr + f"""; @launch grid=(256,1,1) block=(512,1,1) lds={LDS1}
.amdgcn_target "amdgcn-amd-amdhsa--gfx950"
.text
{k1}.section .rodata,"a"
.p2align 6
{d1}"""
open(sys.argv[1], "w").write(out)
```
